```python
import torch

def _softmax(x, axis=-1):
    return torch.softmax(x, dim=axis)
def _gelu(x):
    return torch.nn.functional.gelu(x, approximate="tanh")
def _silu(x):
    return torch.nn.functional.silu(x)
def _sigmoid(x):
    return torch.sigmoid(x)
def _layernorm(x, axis=-1, eps=1e-5):
    m = x.mean(dim=axis, keepdim=True)
    v = x.var(dim=axis, keepdim=True, unbiased=False)
    return (x - m) / torch.sqrt(v + eps)
def _scatter_add(tgt, idx, src, axis=0):
    return tgt.clone().index_add_(axis, idx, src)
def _segment_sum(src, seg, n):
    out = torch.zeros((n,) + src.shape[1:], dtype=src.dtype)
    return out.index_add_(0, seg, src)
def _pad(x, pw):
    flat = tuple(v for pair in reversed(pw) for v in pair)
    return torch.nn.functional.pad(x, flat)

kernel_name = 'standalone__kv_cache_quant_int4_int2_kv_with_per_channel_or_per_token_scales__decode'

def setup_inputs():

    _w = (lambda a: (lambda t: t.to(torch.bfloat16) if t.is_floating_point() else t)(torch.as_tensor(a)))
    B = 1
    Sq = 1
    Skv = 65536
    Hq = 32
    Hkv = 4
    Dh = 128
    bits = 2
    G = 128
    if G <= 0 or G >= Skv:
        G = max(1, Skv // 2)
    Skv = (Skv // G) * G
    ngk = Skv // G
    qmax = (1 << bits) - 1
    return {
        "q": _w((lambda *s: torch.randn(*s, dtype=torch.bfloat16) * 3.2)(B, Hq, Sq, Dh)),
        "qk": _w(torch.randint(0, qmax + 1, (B, Hkv, Skv, Dh)).to(torch.int32)),
        "qv": _w(torch.randint(0, qmax + 1, (B, Hkv, Skv, Dh)).to(torch.int32)),
        "k_scales": _w(torch.abs((lambda *s: torch.randn(*s, dtype=torch.bfloat16) * 3.2)(B, Hkv, ngk, Dh)) * 0.05 + 0.02),
        "k_zeros": _w((lambda *s: torch.randn(*s, dtype=torch.bfloat16) * 3.2)(B, Hkv, ngk, Dh) + float(qmax) / 2.0),
        "v_scales": _w(torch.abs((lambda *s: torch.randn(*s, dtype=torch.bfloat16) * 0.05)(B, Hkv, Skv, 1)) * 0.05 + 0.02),
        "v_zeros": _w((lambda *s: torch.randn(*s, dtype=torch.bfloat16) * 0.05)(B, Hkv, Skv, 1) + float(qmax) / 2.0),
    }

def reference(q, qk, qv, k_scales, k_zeros, v_scales, v_zeros):
    B, Hq, Sq, Dh = q.shape
    Hkv, Skv = qk.shape[1], qk.shape[2]
    ngk = k_scales.shape[2]
    G = Skv // ngk
    ks = (lambda x, n, axis: torch.repeat_interleave(x, n, dim=axis))(k_scales, G, axis=2)
    kz = (lambda x, n, axis: torch.repeat_interleave(x, n, dim=axis))(k_zeros, G, axis=2)
    k = ((lambda x, dt: x.to(dt))(qk, q.dtype) - kz) * ks
    v = ((lambda x, dt: x.to(dt))(qv, q.dtype) - v_zeros) * v_scales
    rep = Hq // Hkv
    if rep > 1:
        k = (lambda x, n, axis: torch.repeat_interleave(x, n, dim=axis))(k, rep, axis=1)
        v = (lambda x, n, axis: torch.repeat_interleave(x, n, dim=axis))(v, rep, axis=1)
    scale = float(Dh) ** -0.5
    logits = torch.einsum("bhqd,bhkd->bhqk", q, k) * scale
    p = _softmax(logits, axis=-1)
    o = torch.einsum("bhqk,bhkd->bhqd", p, v)
    return o
```

```python
import sys, argparse
NAME = "standalone__kv_cache_quant_int4_int2_kv_with_per_channel_or_per_token_scales__decode"
HEADER = open("cdna_kernels/" + NAME + ".s.ref").read().split("; Override launch")[0]

LOG2E = 0x3fb8aa3b
SCALE = 0x3db504f3
ROW = 288
KT = 32 * ROW
WS_M = 1 << 20
WS_L = WS_M + 8192

def vr(base, n):
    return f"v[{base}:{base+n-1}]" if n > 1 else f"v{base}"

def descriptor(A, name, nv, ns):
    A(f".amdhsa_kernel {name}")
    A(f"  .amdhsa_next_free_vgpr {nv}")
    A(f"  .amdhsa_next_free_sgpr {ns}")
    A(f"  .amdhsa_accum_offset {(nv+3)//4*4}")
    A("  .amdhsa_group_segment_fixed_size 0")
    A("  .amdhsa_kernarg_size 80")
    A("  .amdhsa_user_sgpr_count 2")
    A("  .amdhsa_user_sgpr_kernarg_segment_ptr 1")
    A("  .amdhsa_system_sgpr_workgroup_id_x 1")
    A("  .amdhsa_float_denorm_mode_32 3")
    A(".end_amdhsa_kernel")

def gen_main(A, o):
    ld = o.flags
    vLANE = 1; vG = 2; vC = 3; vOFF = 4; vLW = 5; vLR = 6; vT0 = 7
    vVS = 8; vVZ = 9
    vY = 10
    vM = 14; vL = 15
    X = 16
    S = 80
    KS = 112; KZ = 120
    BQ = 128
    AF = 144
    O = 160
    PB = 192
    VZP = 208
    VZ = 224
    VSP = 112
    TMP = 16
    NV = 232
    K = NAME + "_kernel" if o.single else "kivi_main_kernel"
    A(f".globl {K}")
    A(".p2align 8")
    A(f".type {K},@function")
    A(f"{K}:")
    A("  s_cmp_ge_u32 s2, 256")
    A("  s_cbranch_scc1 L_end")
    A("  s_load_dwordx16 s[4:19], s[0:1], 0")
    A("  s_load_dwordx4 s[20:23], s[0:1], 64")
    A(f"  v_lshrrev_b32 v{vT0}, 6, v0")
    A(f"  v_and_b32 v{vLANE}, 63, v0")
    A(f"  v_readfirstlane_b32 s3, v{vT0}")
    A(f"  v_lshrrev_b32 v{vG}, 4, v{vLANE}")
    A(f"  v_and_b32 v{vC}, 15, v{vLANE}")
    A(f"  v_lshlrev_b32 v{vOFF}, 12, v{vG}")
    A(f"  v_lshl_add_u32 v{vOFF}, v{vC}, 4, v{vOFF}")
    A("  s_lshl_b32 s24, s2, 3")
    A("  s_add_u32 s24, s24, s3")
    A("  s_lshl_b32 s25, s24, 16")
    A("  s_lshl_b32 s26, s24, 8")
    A(f"  v_lshl_add_u32 v{vT0}, v{vC}, 3, s26")
    A("  s_lshr_b32 s27, s2, 6")
    A("  s_lshl_b32 s34, s27, 11")
    A(f"  v_and_b32 v{vLW}, 7, v{vC}")
    A(f"  v_lshlrev_b32 v{vLW}, 8, v{vLW}")
    A(f"  v_lshl_add_u32 v{vLW}, v{vG}, 4, v{vLW}")
    A(f"  v_add_u32 v{vLW}, s34, v{vLW}")
    A("  s_mov_b32 s30, 0x10000")
    A("  s_mov_b32 s31, 0x00020000")
    A("  s_waitcnt lgkmcnt(0)")
    A("  s_add_u32 s28, s6, s25")
    A("  s_addc_u32 s29, s7, 0")
    A(f"  global_load_dwordx2 {vr(S,2)}, v{vT0}, s[10:11]")
    A(f"  global_load_dwordx2 {vr(S+2,2)}, v{vT0}, s[10:11] offset:128")
    A(f"  global_load_dwordx2 {vr(S+4,2)}, v{vT0}, s[12:13]")
    A(f"  global_load_dwordx2 {vr(S+6,2)}, v{vT0}, s[12:13] offset:128")
    for s in range(4):
        A(f"  global_load_dwordx4 {vr(BQ+4*s,4)}, v{vLW}, s[4:5] offset:{64*s}")
    def load(n, soff):
        half, r = n >> 3, n & 7
        A(f"  buffer_load_dwordx4 {vr(X+4*n,4)}, v{vOFF}, s[28:31], {soff} offen offset:{r*512+half*256} {ld}")
    for n in range(16):
        load(n, "0")
    A(f"  v_lshl_add_u32 v{vT0}, v{vLANE}, 2, s26")
    A(f"  global_load_dword v{vVS}, v{vT0}, s[14:15]")
    A(f"  global_load_dword v{vVZ}, v{vT0}, s[16:17]")
    A("  s_add_u32 s32, s8, s25")
    A("  s_addc_u32 s33, s9, 0")
    A(f"  s_mul_i32 s35, s3, {KT}")
    A(f"  s_add_u32 s35, s35, 512")
    A(f"  v_mul_u32_u24 v{vLW}, {4*ROW}, v{vG}")
    A(f"  v_lshl_add_u32 v{vLW}, v{vC}, 3, v{vLW}")
    A(f"  v_add_u32 v{vLW}, s35, v{vLW}")
    A(f"  v_mul_u32_u24 v{vLR}, {ROW}, v{vC}")
    A(f"  v_lshl_add_u32 v{vLR}, v{vG}, 4, v{vLR}")
    A(f"  v_add_u32 v{vLR}, s35, v{vLR}")
    for i in range(32):
        A(f"  v_mov_b32 v{O+i}, 0")
    A("  s_mov_b32 s36, 0")
    A("  s_mov_b32 s37, 0xffff0000")
    A(f"  s_mov_b32 s38, {SCALE:#x}")
    A(f"  s_mov_b32 s39, {LOG2E:#x}")
    A("  s_waitcnt vmcnt(22)")
    for i in range(4):
        A(f"  v_lshlrev_b32 v{KS+2*i}, 16, v{S+i}")
        A(f"  v_and_b32 v{KS+2*i+1}, s37, v{S+i}")
        A(f"  v_lshlrev_b32 v{KZ+2*i}, 16, v{S+4+i}")
        A(f"  v_and_b32 v{KZ+2*i+1}, s37, v{S+4+i}")
    A("L_kloop:")
    A("  s_add_u32 s36, s36, 0x4000")
    A("  s_cmp_lg_u32 s36, 0x10000")
    A("  s_cbranch_scc1 L_knosw")
    A("  s_mov_b32 s28, s32")
    A("  s_mov_b32 s29, s33")
    A("  s_mov_b32 s36, 0")
    A("L_knosw:")
    def qk_reads(hf):
        for u in range(2):
            for s2 in range(2):
                s = 2 * hf + s2
                A(f"  ds_read_b128 {vr(AF+4*(2*u+s2),4)}, v{vLR} offset:{u*16*ROW+s*64}")
    def qk_mfma(hf):
        for s2 in range(2):
            for u in range(2):
                s = 2 * hf + s2
                c = "0" if s == 0 else vr(S+24+4*u, 4)
                A(f"  v_mfma_f32_16x16x32_bf16 {vr(S+24+4*u,4)}, {vr(AF+4*(2*u+s2),4)}, {vr(BQ+4*s,4)}, {c}")
    for n in range(16):
        half, r = n >> 3, n & 7
        x = X + 4 * n
        y = vY + 2 * (n & 1)
        A("  s_waitcnt vmcnt(15)")
        for j in range(4):
            A(f"  v_cvt_f32_i32 v{x+j}, v{x+j}")
        for j in (0, 2):
            A(f"  v_pk_add_f32 {vr(x+j,2)}, {vr(x+j,2)}, {vr(KZ+4*half+j,2)} neg_lo:[0,1] neg_hi:[0,1]")
        for j in range(4):
            A(f"  v_cvt_pk_bf16_f32 v{x+j}, 0, v{x+j}")
        for j in (0, 2):
            A(f"  v_pk_mul_f32 {vr(x+j,2)}, {vr(x+j,2)}, {vr(KS+4*half+j,2)}")
        A(f"  v_cvt_pk_bf16_f32 v{y}, v{x}, v{x+1}")
        A(f"  v_cvt_pk_bf16_f32 v{y+1}, v{x+2}, v{x+3}")
        load(n, "s36")
        A(f"  ds_write_b64 v{vLW}, {vr(y,2)} offset:{(16*(r>>2)+(r&3))*ROW+half*128}")
        if n == 2:
            for i in range(24):
                A(f"  v_mov_b32 v{S+i}, v{S+8+i}")
        if n == 7:
            qk_reads(0)
        if n == 9:
            A("  s_waitcnt lgkmcnt(2)")
            qk_mfma(0)
        if n == 15:
            qk_reads(1)
            A("  s_waitcnt lgkmcnt(0)")
            qk_mfma(1)
    A("  s_cmp_lg_u32 s36, 0")
    A("  s_cbranch_scc1 L_kloop")
    A(f"  v_lshl_add_u32 v{vT0}, v{vLANE}, 2, s35")
    A(f"  ds_write_b32 v{vT0}, v{vVS}")
    A(f"  ds_write_b32 v{vT0}, v{vVZ} offset:256")
    A(f"  v_lshl_add_u32 v{vT0}, v{vG}, 4, s35")
    for t in range(4):
        A(f"  ds_read_b128 {vr(VSP+4*t,4)}, v{vT0} offset:{64*t}")
    for t in range(4):
        A(f"  ds_read_b128 {vr(VZP+4*t,4)}, v{vT0} offset:{256+64*t}")
    for i in range(32):
        A(f"  v_cvt_pk_bf16_f32 v{S+i}, 0, v{S+i}")
    for i in range(32):
        A(f"  v_mul_f32 v{S+i}, s38, v{S+i}")
    for i in range(32):
        A(f"  v_cvt_pk_bf16_f32 v{S+i}, 0, v{S+i}")
    A(f"  v_max3_f32 v{vM}, v{S}, v{S+1}, v{S+2}")
    A(f"  v_max3_f32 v{vL}, v{S+3}, v{S+4}, v{S+5}")
    for i in range(6, 30, 4):
        A(f"  v_max3_f32 v{vM}, v{vM}, v{S+i}, v{S+i+1}")
        A(f"  v_max3_f32 v{vL}, v{vL}, v{S+i+2}, v{S+i+3}")
    A(f"  v_max3_f32 v{vM}, v{vM}, v{S+30}, v{S+31}")
    A(f"  v_max_f32 v{vM}, v{vM}, v{vL}")
    def xgroup(op, v, t):
        A(f"  v_mov_b32 v{t}, v{v}")
        A("  s_nop 1")
        A(f"  v_permlane16_swap_b32 v{v}, v{t}")
        A(f"  {op} v{v}, v{v}, v{t}")
        A(f"  v_mov_b32 v{t}, v{v}")
        A("  s_nop 1")
        A(f"  v_permlane32_swap_b32 v{v}, v{t}")
        A(f"  {op} v{v}, v{v}, v{t}")
    xgroup("v_max_f32", vM, vY)
    A(f"  v_mul_f32 v{vM}, s39, v{vM}")
    for i in range(32):
        A(f"  v_fma_f32 v{S+i}, v{S+i}, s39, -v{vM}")
    for i in range(32):
        A(f"  v_exp_f32 v{S+i}, v{S+i}")
    A(f"  v_add_f32 v{vL}, v{S}, v{S+1}")
    A(f"  v_add_f32 v{vY}, v{S+2}, v{S+3}")
    for i in range(4, 32, 2):
        A(f"  v_add_f32 v{vL}, v{vL}, v{S+i}")
        A(f"  v_add_f32 v{vY}, v{vY}, v{S+i+1}")
    A(f"  v_add_f32 v{vL}, v{vL}, v{vY}")
    A("  s_waitcnt lgkmcnt(0)")
    for i in range(16):
        y = vY + 2 * (i & 1)
        A(f"  v_lshlrev_b32 v{y}, 16, v{VSP+i}")
        A(f"  v_and_b32 v{y+1}, s37, v{VSP+i}")
        A(f"  v_pk_mul_f32 {vr(S+2*i,2)}, {vr(S+2*i,2)}, {vr(y,2)}")
        A(f"  v_cvt_pk_bf16_f32 v{PB+i}, v{S+2*i}, v{S+2*i+1}")
    xgroup("v_add_f32", vL, vY)
    AV = AF
    A("L_vloop:")
    A("  s_add_u32 s36, s36, 0x4000")
    for i in range(4):
        A(f"  v_lshlrev_b32 v{VZ+2*i}, 16, v{VZP+i}")
        A(f"  v_and_b32 v{VZ+2*i+1}, s37, v{VZP+i}")
    for i in range(12):
        A(f"  v_mov_b32 v{VZP+i}, v{VZP+4+i}")
    for n in range(16):
        half, r = n >> 3, n & 7
        x = X + 4 * n
        A(f"  s_waitcnt vmcnt({15 - (n & 1)})")
        for j in range(4):
            A(f"  v_cvt_f32_i32 v{x+j}, v{x+j}")
        sel = "op_sel:[0,1] op_sel_hi:[1,1]" if r & 1 else "op_sel_hi:[1,0]"
        for j in (0, 2):
            A(f"  v_pk_add_f32 {vr(x+j,2)}, {vr(x+j,2)}, {vr(VZ+(r&~1),2)} {sel} neg_lo:[0,1] neg_hi:[0,1]")
        if r & 1:
            for j in range(4):
                A(f"  v_cvt_pk_bf16_f32 v{AV+4*j+(r>>1)}, v{x-4+j}, v{x+j}")
            load(n - 1, "s36")
            load(n, "s36")
        if r == 7:
            for j in range(4):
                a = O + 16 * half + 4 * j
                A(f"  v_mfma_f32_16x16x32_bf16 {vr(a,4)}, {vr(AV+4*j,4)}, {vr(PB,4)}, {vr(a,4)}")
    for i in range(12):
        A(f"  v_mov_b32 v{PB+i}, v{PB+4+i}")
    A("  s_cmp_lg_u32 s36, 0x10000")
    A("  s_cbranch_scc1 L_vloop")
    ML = 0
    A(f"  v_and_b32 v{vT0}, 7, v{vC}")
    A(f"  v_lshlrev_b32 v{vT0}, 6, v{vT0}")
    A("  s_lshl_b32 s40, s3, 3")
    A(f"  v_add_u32 v{vY}, s40, v{vT0}")
    A(f"  ds_write_b64 v{vY}, {vr(vM,2)} offset:{ML}")
    A("  s_waitcnt vmcnt(0) lgkmcnt(0)")
    A("  s_barrier")
    for k in range(4):
        A(f"  ds_read_b128 {vr(S+4*k,4)}, v{vT0} offset:{ML+16*k}")
    A("  s_waitcnt lgkmcnt(0)")
    MM = vY; LL = vY + 1; FF = vY + 2
    A(f"  v_max3_f32 v{MM}, v{S}, v{S+2}, v{S+4}")
    A(f"  v_max3_f32 v{MM}, v{MM}, v{S+6}, v{S+8}")
    A(f"  v_max3_f32 v{MM}, v{MM}, v{S+10}, v{S+12}")
    A(f"  v_max_f32 v{MM}, v{MM}, v{S+14}")
    A(f"  v_sub_f32 v{FF}, v{vM}, v{MM}")
    A(f"  v_exp_f32 v{FF}, v{FF}")
    for k in range(8):
        A(f"  v_sub_f32 v{S+2*k}, v{S+2*k}, v{MM}")
    for k in range(8):
        A(f"  v_exp_f32 v{S+2*k}, v{S+2*k}")
    for half in range(2):
        for i in range(4):
            for j in range(4):
                A(f"  v_mul_f32 v{TMP+16*half+4*i+j}, v{FF}, v{O+16*half+4*j+i}")
    A(f"  v_mul_f32 v{LL}, v{S}, v{S+1}")
    for k in range(1, 8):
        A(f"  v_fmac_f32 v{LL}, v{S+2*k}, v{S+2*k+1}")
    A(f"  v_lshlrev_b32 v{vT0}, 3, v{vT0}")
    A(f"  v_lshl_add_u32 v{vT0}, v{vG}, 6, v{vT0}")
    A("  s_lshl_b32 s40, s3, 12")
    A(f"  v_add_u32 v{vT0}, s40, v{vT0}")
    A(f"  v_cmp_gt_u32 vcc, 8, v{vC}")
    A("  s_and_saveexec_b64 s[42:43], vcc")
    for half in range(2):
        for i in range(4):
            A(f"  ds_write_b128 v{vT0}, {vr(TMP+16*half+4*i,4)} offset:{512+256*half+16*i}")
    A("  s_mov_b64 exec, s[42:43]")
    A("  s_waitcnt lgkmcnt(0)")
    A("  s_barrier")
    A(f"  v_lshlrev_b32 v{vT0}, 3, v0")
    for k in range(8):
        A(f"  ds_read_b64 {vr(S+2*k,2)}, v{vT0} offset:{512+4096*k}")
    A("  s_lshl_b32 s40, s2, 12")
    A(f"  v_add_u32 v{vT0}, s40, v{vT0}")
    A("  s_and_b32 s41, s2, 63")
    A("  s_lshl_b32 s41, s41, 2")
    A("  s_add_u32 s41, s41, s34")
    A(f"  s_add_u32 s41, s41, {WS_M}")
    A(f"  v_lshl_add_u32 v{vOFF}, v0, 8, s41")
    A("  s_waitcnt lgkmcnt(0)")
    for k in (1, 3, 5, 7):
        A(f"  v_pk_add_f32 {vr(S+2*(k-1),2)}, {vr(S+2*(k-1),2)}, {vr(S+2*k,2)}")
    A(f"  v_pk_add_f32 {vr(S,2)}, {vr(S,2)}, {vr(S+4,2)}")
    A(f"  v_pk_add_f32 {vr(S+8,2)}, {vr(S+8,2)}, {vr(S+12,2)}")
    A(f"  v_pk_add_f32 {vr(S,2)}, {vr(S,2)}, {vr(S+8,2)}")
    A(f"  global_store_dwordx2 v{vT0}, {vr(S,2)}, s[22:23]")
    A("  v_cmp_gt_u32 vcc, 8, v0")
    A("  s_and_saveexec_b64 s[42:43], vcc")
    A("  s_cbranch_execz L_end")
    A(f"  global_store_dword v{vOFF}, v{MM}, s[22:23]")
    A(f"  v_add_u32 v{vOFF}, {WS_L-WS_M}, v{vOFF}")
    A(f"  global_store_dword v{vOFF}, v{LL}, s[22:23]")
    A("L_end:")
    A("  s_endpgm")
    return K, NV, 48, 8 * KT + 512

def gen_combine(A, o):
    K = "kivi_combine_kernel"
    A(f".globl {K}")
    A(".p2align 8")
    A(f".type {K},@function")
    A(f"{K}:")
    A("  s_cmp_ge_u32 s2, 32")
    A("  s_cbranch_scc1 L_cend")
    A("  s_load_dwordx2 s[4:5], s[0:1], 56")
    A("  s_load_dwordx2 s[6:7], s[0:1], 72")
    A("  s_lshr_b32 s8, s2, 3")
    A("  s_and_b32 s9, s2, 7")
    A("  s_lshl_b32 s8, s8, 18")
    A("  s_lshl_b32 s9, s9, 9")
    A("  s_add_u32 s8, s8, s9")
    A("  v_and_b32 v1, 31, v0")
    A("  v_lshrrev_b32 v2, 5, v0")
    A("  v_and_b32 v3, 63, v0")
    A("  v_lshlrev_b32 v4, 15, v2")
    A("  v_lshl_add_u32 v4, v1, 4, v4")
    A("  v_add_u32 v4, s8, v4")
    A("  v_add_u32 v5, 0x2000, v4")
    A("  v_add_u32 v6, 0x4000, v4")
    A("  v_add_u32 v7, 0x6000, v4")
    A("  v_add_u32 v4, 0x1000, v4")
    A("  v_add_u32 v5, 0x1000, v5")
    A("  v_add_u32 v6, 0x1000, v6")
    A("  v_add_u32 v7, 0x1000, v7")
    A("  s_lshl_b32 s10, s2, 8")
    A(f"  s_add_u32 s10, s10, {WS_M}")
    A("  v_lshl_add_u32 v8, v3, 2, s10")
    A("  v_lshl_add_u32 v9, v2, 5, s10")
    A(f"  v_add_u32 v10, {WS_L-WS_M}, v8")
    A("  s_waitcnt lgkmcnt(0)")
    A("  global_load_dword v12, v8, s[6:7]")
    A("  global_load_dword v13, v10, s[6:7]")
    A("  global_load_dwordx4 v[16:19], v9, s[6:7]")
    A("  global_load_dwordx4 v[20:23], v9, s[6:7] offset:16")
    for k in range(8):
        A(f"  global_load_dwordx4 v[{24+4*k}:{27+4*k}], v{4+k//2}, s[6:7] offset:{-4096 if k % 2 == 0 else 0}")
    A("  s_waitcnt vmcnt(10)")
    def allreduce(op, v, t):
        for ror in (8, 4, 2, 1):
            A("  s_nop 1")
            A(f"  {op}_dpp v{v}, v{v}, v{v} row_ror:{ror} row_mask:0xf bank_mask:0xf")
        A(f"  v_mov_b32 v{t}, v{v}")
        A("  s_nop 1")
        A(f"  v_permlane16_swap_b32 v{v}, v{t}")
        A(f"  {op} v{v}, v{v}, v{t}")
        A(f"  v_mov_b32 v{t}, v{v}")
        A("  s_nop 1")
        A(f"  v_permlane32_swap_b32 v{v}, v{t}")
        A(f"  {op} v{v}, v{v}, v{t}")
    A("  v_mov_b32 v14, v12")
    allreduce("v_max_f32", 14, 15)
    A("  v_sub_f32 v12, v12, v14")
    A("  v_exp_f32 v12, v12")
    A("  s_nop 0")
    A("  v_mul_f32 v13, v12, v13")
    allreduce("v_add_f32", 13, 15)
    A("  s_waitcnt vmcnt(8)")
    for k in range(8):
        A(f"  v_sub_f32 v{16+k}, v{16+k}, v14")
    for k in range(8):
        A(f"  v_exp_f32 v{16+k}, v{16+k}")
    A("  v_rcp_f32 v13, v13")
    for k in range(8):
        A(f"  s_waitcnt vmcnt({7-k})")
        for j in range(4):
            if k == 0:
                A(f"  v_mul_f32 v{56+j}, v16, v{24+j}")
            else:
                A(f"  v_fmac_f32 v{56+j}, v{16+k}, v{24+4*k+j}")
    A("  v_lshlrev_b32 v4, 4, v0")
    A("  ds_write_b128 v4, v[56:59]")
    A("  s_waitcnt lgkmcnt(0)")
    A("  s_barrier")
    A("  v_cmp_gt_u32 vcc, 64, v0")
    A("  s_and_saveexec_b64 s[12:13], vcc")
    A("  s_cbranch_execz L_cend")
    A("  v_lshlrev_b32 v4, 3, v0")
    for k in range(8):
        A(f"  ds_read_b64 v[{16+2*k}:{17+2*k}], v4 offset:{512*k}")
    A("  s_lshl_b32 s10, s2, 8")
    A("  v_lshl_add_u32 v5, v0, 2, s10")
    A("  s_waitcnt lgkmcnt(0)")
    for k in (1, 3, 5, 7):
        A(f"  v_pk_add_f32 v[{16+2*(k-1)}:{17+2*(k-1)}], v[{16+2*(k-1)}:{17+2*(k-1)}], v[{16+2*k}:{17+2*k}]")
    A("  v_pk_add_f32 v[16:17], v[16:17], v[20:21]")
    A("  v_pk_add_f32 v[24:25], v[24:25], v[28:29]")
    A("  v_pk_add_f32 v[16:17], v[16:17], v[24:25]")
    A("  v_mul_f32 v16, v13, v16")
    A("  v_mul_f32 v17, v13, v17")
    A("  v_cvt_pk_bf16_f32 v16, v16, v17")
    A("  global_store_dword v5, v16, s[4:5]")
    A("L_cend:")
    A("  s_endpgm")
    return K, 60, 16, 4096

def generate(o):
    body = []
    A = body.append
    A('.amdgcn_target "amdgcn-amd-amdhsa--gfx950"')
    A(".text")
    k1 = gen_main(A, o)
    k2 = gen_combine(A, o)
    A('.section .rodata,"a"')
    for k, nv, ns, lds in (k1, k2):
        A(".p2align 6")
        descriptor(A, k, nv, ns)
    head = HEADER
    head += f"; @launch kernel={k1[0]} grid=(256,1,1) block=(512,1,1) lds={k1[3]}\n"
    head += f"; @launch kernel={k2[0]} grid=(32,1,1) block=(256,1,1) lds={k2[3]}\n"
    return head + "\n".join(body) + "\n"

if __name__ == "__main__":
    ap = argparse.ArgumentParser()
    ap.add_argument("-o", default="cdna_kernels/" + NAME + ".s")
    ap.add_argument("--flags", default="nt")
    ap.add_argument("--single", action="store_true")
    o = ap.parse_args()
    open(o.o, "w").write(generate(o))
```

```python
import sys, argparse
NAME = "standalone__kv_cache_quant_int4_int2_kv_with_per_channel_or_per_token_scales__decode"
HEADER = open("cdna_kernels/" + NAME + ".s.ref").read().split("; Override launch")[0]

LOG2E = 0x3fb8aa3b
SCALE = 0x3db504f3
ROW = 288
KT = 32 * ROW
WS_M = 1 << 20
WS_L = WS_M + 8192

def vr(base, n):
    return f"v[{base}:{base+n-1}]" if n > 1 else f"v{base}"

def descriptor(A, name, nv, ns):
    A(f".amdhsa_kernel {name}")
    A(f"  .amdhsa_next_free_vgpr {nv}")
    A(f"  .amdhsa_next_free_sgpr {ns}")
    A(f"  .amdhsa_accum_offset {(nv+3)//4*4}")
    A("  .amdhsa_group_segment_fixed_size 0")
    A("  .amdhsa_kernarg_size 80")
    A("  .amdhsa_user_sgpr_count 2")
    A("  .amdhsa_user_sgpr_kernarg_segment_ptr 1")
    A("  .amdhsa_system_sgpr_workgroup_id_x 1")
    A("  .amdhsa_float_denorm_mode_32 3")
    A(".end_amdhsa_kernel")

def gen_main(A, o):
    ld = o.flags
    nst = [0]
    def stamp():
        if o.stamp:
            A(f"  s_memrealtime s[{60+2*nst[0]}:{61+2*nst[0]}]")
            nst[0] += 1
    vLANE = 1; vG = 2; vC = 3; vOFF = 4; vLW = 5; vLR = 6; vT0 = 7
    vVS = 8; vVZ = 9
    vY = 10
    vM = 14; vL = 15
    X = 16
    S = 80
    KS = 112; KZ = 120
    BQ = 128
    AF = 144
    O = 160
    PB = 192
    VZP = 208
    VZ = 224
    VSP = 112
    TMP = 16
    NV = 232
    K = NAME + "_kernel" if o.single else "kivi_main_kernel"
    A(f".globl {K}")
    A(".p2align 8")
    A(f".type {K},@function")
    A(f"{K}:")
    A("  s_cmp_ge_u32 s2, 256")
    A("  s_cbranch_scc1 L_end")
    stamp()
    A("  s_load_dwordx16 s[4:19], s[0:1], 0")
    A("  s_load_dwordx4 s[20:23], s[0:1], 64")
    A(f"  v_lshrrev_b32 v{vT0}, 6, v0")
    A(f"  v_and_b32 v{vLANE}, 63, v0")
    A(f"  v_readfirstlane_b32 s3, v{vT0}")
    A(f"  v_lshrrev_b32 v{vG}, 4, v{vLANE}")
    A(f"  v_and_b32 v{vC}, 15, v{vLANE}")
    A(f"  v_lshlrev_b32 v{vOFF}, 12, v{vG}")
    A(f"  v_lshl_add_u32 v{vOFF}, v{vC}, 4, v{vOFF}")
    A("  s_lshl_b32 s24, s2, 3")
    A("  s_add_u32 s24, s24, s3")
    A("  s_lshl_b32 s25, s24, 16")
    A("  s_lshl_b32 s26, s24, 8")
    A(f"  v_lshl_add_u32 v{vT0}, v{vC}, 3, s26")
    A("  s_lshr_b32 s27, s2, 6")
    A("  s_lshl_b32 s34, s27, 11")
    A(f"  v_and_b32 v{vLW}, 7, v{vC}")
    A(f"  v_lshlrev_b32 v{vLW}, 8, v{vLW}")
    A(f"  v_lshl_add_u32 v{vLW}, v{vG}, 4, v{vLW}")
    A(f"  v_add_u32 v{vLW}, s34, v{vLW}")
    A("  s_mov_b32 s30, 0x10000")
    A("  s_mov_b32 s31, 0x00020000")
    A("  s_waitcnt lgkmcnt(0)")
    stamp()
    A("  s_add_u32 s28, s6, s25")
    A("  s_addc_u32 s29, s7, 0")
    A(f"  global_load_dwordx2 {vr(S,2)}, v{vT0}, s[10:11]")
    A(f"  global_load_dwordx2 {vr(S+2,2)}, v{vT0}, s[10:11] offset:128")
    A(f"  global_load_dwordx2 {vr(S+4,2)}, v{vT0}, s[12:13]")
    A(f"  global_load_dwordx2 {vr(S+6,2)}, v{vT0}, s[12:13] offset:128")
    for s in range(4):
        A(f"  global_load_dwordx4 {vr(BQ+4*s,4)}, v{vLW}, s[4:5] offset:{64*s}")
    def load(n, soff):
        half, r = n >> 3, n & 7
        A(f"  buffer_load_dwordx4 {vr(X+4*n,4)}, v{vOFF}, s[28:31], {soff} offen offset:{r*512+half*256} {ld}")
    for n in range(16):
        load(n, "0")
    A(f"  v_lshl_add_u32 v{vT0}, v{vLANE}, 2, s26")
    A(f"  global_load_dword v{vVS}, v{vT0}, s[14:15]")
    A(f"  global_load_dword v{vVZ}, v{vT0}, s[16:17]")
    A("  s_add_u32 s32, s8, s25")
    A("  s_addc_u32 s33, s9, 0")
    A(f"  s_mul_i32 s35, s3, {KT}")
    A(f"  s_add_u32 s35, s35, 512")
    A(f"  v_mul_u32_u24 v{vLW}, {4*ROW}, v{vG}")
    A(f"  v_lshl_add_u32 v{vLW}, v{vC}, 3, v{vLW}")
    A(f"  v_add_u32 v{vLW}, s35, v{vLW}")
    A(f"  v_mul_u32_u24 v{vLR}, {ROW}, v{vC}")
    A(f"  v_lshl_add_u32 v{vLR}, v{vG}, 4, v{vLR}")
    A(f"  v_add_u32 v{vLR}, s35, v{vLR}")
    for i in range(32):
        A(f"  v_mov_b32 v{O+i}, 0")
    A("  s_mov_b32 s36, 0")
    A("  s_mov_b32 s37, 0xffff0000")
    A(f"  s_mov_b32 s38, {SCALE:#x}")
    A(f"  s_mov_b32 s39, {LOG2E:#x}")
    A("  s_waitcnt vmcnt(22)")
    for i in range(4):
        A(f"  v_lshlrev_b32 v{KS+2*i}, 16, v{S+i}")
        A(f"  v_and_b32 v{KS+2*i+1}, s37, v{S+i}")
        A(f"  v_lshlrev_b32 v{KZ+2*i}, 16, v{S+4+i}")
        A(f"  v_and_b32 v{KZ+2*i+1}, s37, v{S+4+i}")
    stamp()
    A("L_kloop:")
    A("  s_add_u32 s36, s36, 0x4000")
    A("  s_cmp_lg_u32 s36, 0x10000")
    A("  s_cbranch_scc1 L_knosw")
    A("  s_mov_b32 s28, s32")
    A("  s_mov_b32 s29, s33")
    A("  s_mov_b32 s36, 0")
    A("L_knosw:")
    def qk_reads(hf):
        for u in range(2):
            for s2 in range(2):
                s = 2 * hf + s2
                A(f"  ds_read_b128 {vr(AF+4*(2*u+s2),4)}, v{vLR} offset:{u*16*ROW+s*64}")
    def qk_mfma(hf):
        for s2 in range(2):
            for u in range(2):
                s = 2 * hf + s2
                c = "0" if s == 0 else vr(S+24+4*u, 4)
                A(f"  v_mfma_f32_16x16x32_bf16 {vr(S+24+4*u,4)}, {vr(AF+4*(2*u+s2),4)}, {vr(BQ+4*s,4)}, {c}")
    for n in range(16):
        half, r = n >> 3, n & 7
        x = X + 4 * n
        y = vY + 2 * (n & 1)
        A("  s_waitcnt vmcnt(15)")
        for j in range(4):
            A(f"  v_cvt_f32_i32 v{x+j}, v{x+j}")
        for j in (0, 2):
            A(f"  v_pk_add_f32 {vr(x+j,2)}, {vr(x+j,2)}, {vr(KZ+4*half+j,2)} neg_lo:[0,1] neg_hi:[0,1]")
        for j in range(4):
            A(f"  v_cvt_pk_bf16_f32 v{x+j}, 0, v{x+j}")
        for j in (0, 2):
            A(f"  v_pk_mul_f32 {vr(x+j,2)}, {vr(x+j,2)}, {vr(KS+4*half+j,2)}")
        A(f"  v_cvt_pk_bf16_f32 v{y}, v{x}, v{x+1}")
        A(f"  v_cvt_pk_bf16_f32 v{y+1}, v{x+2}, v{x+3}")
        load(n, "s36")
        A(f"  ds_write_b64 v{vLW}, {vr(y,2)} offset:{(16*(r>>2)+(r&3))*ROW+half*128}")
        if n == 2:
            for i in range(24):
                A(f"  v_mov_b32 v{S+i}, v{S+8+i}")
        if n == 7:
            qk_reads(0)
        if n == 9:
            A("  s_waitcnt lgkmcnt(2)")
            qk_mfma(0)
        if n == 15:
            qk_reads(1)
            A("  s_waitcnt lgkmcnt(0)")
            qk_mfma(1)
    A("  s_cmp_lg_u32 s36, 0")
    A("  s_cbranch_scc1 L_kloop")
    stamp()
    A(f"  v_lshl_add_u32 v{vT0}, v{vLANE}, 2, s35")
    A(f"  ds_write_b32 v{vT0}, v{vVS}")
    A(f"  ds_write_b32 v{vT0}, v{vVZ} offset:256")
    A(f"  v_lshl_add_u32 v{vT0}, v{vG}, 4, s35")
    for t in range(4):
        A(f"  ds_read_b128 {vr(VSP+4*t,4)}, v{vT0} offset:{64*t}")
    for t in range(4):
        A(f"  ds_read_b128 {vr(VZP+4*t,4)}, v{vT0} offset:{256+64*t}")
    for i in range(32):
        A(f"  v_cvt_pk_bf16_f32 v{S+i}, 0, v{S+i}")
    for i in range(32):
        A(f"  v_mul_f32 v{S+i}, s38, v{S+i}")
    for i in range(32):
        A(f"  v_cvt_pk_bf16_f32 v{S+i}, 0, v{S+i}")
    A(f"  v_max3_f32 v{vM}, v{S}, v{S+1}, v{S+2}")
    A(f"  v_max3_f32 v{vL}, v{S+3}, v{S+4}, v{S+5}")
    for i in range(6, 30, 4):
        A(f"  v_max3_f32 v{vM}, v{vM}, v{S+i}, v{S+i+1}")
        A(f"  v_max3_f32 v{vL}, v{vL}, v{S+i+2}, v{S+i+3}")
    A(f"  v_max3_f32 v{vM}, v{vM}, v{S+30}, v{S+31}")
    A(f"  v_max_f32 v{vM}, v{vM}, v{vL}")
    def xgroup(op, v, t):
        A(f"  v_mov_b32 v{t}, v{v}")
        A("  s_nop 1")
        A(f"  v_permlane16_swap_b32 v{v}, v{t}")
        A(f"  {op} v{v}, v{v}, v{t}")
        A(f"  v_mov_b32 v{t}, v{v}")
        A("  s_nop 1")
        A(f"  v_permlane32_swap_b32 v{v}, v{t}")
        A(f"  {op} v{v}, v{v}, v{t}")
    xgroup("v_max_f32", vM, vY)
    A(f"  v_mul_f32 v{vM}, s39, v{vM}")
    for i in range(32):
        A(f"  v_fma_f32 v{S+i}, v{S+i}, s39, -v{vM}")
    for i in range(32):
        A(f"  v_exp_f32 v{S+i}, v{S+i}")
    A(f"  v_add_f32 v{vL}, v{S}, v{S+1}")
    A(f"  v_add_f32 v{vY}, v{S+2}, v{S+3}")
    for i in range(4, 32, 2):
        A(f"  v_add_f32 v{vL}, v{vL}, v{S+i}")
        A(f"  v_add_f32 v{vY}, v{vY}, v{S+i+1}")
    A(f"  v_add_f32 v{vL}, v{vL}, v{vY}")
    A("  s_waitcnt lgkmcnt(0)")
    for i in range(16):
        y = vY + 2 * (i & 1)
        A(f"  v_lshlrev_b32 v{y}, 16, v{VSP+i}")
        A(f"  v_and_b32 v{y+1}, s37, v{VSP+i}")
        A(f"  v_pk_mul_f32 {vr(S+2*i,2)}, {vr(S+2*i,2)}, {vr(y,2)}")
        A(f"  v_cvt_pk_bf16_f32 v{PB+i}, v{S+2*i}, v{S+2*i+1}")
    xgroup("v_add_f32", vL, vY)
    stamp()
    AV = AF
    A("L_vloop:")
    A("  s_add_u32 s36, s36, 0x4000")
    for i in range(4):
        A(f"  v_lshlrev_b32 v{VZ+2*i}, 16, v{VZP+i}")
        A(f"  v_and_b32 v{VZ+2*i+1}, s37, v{VZP+i}")
    for i in range(12):
        A(f"  v_mov_b32 v{VZP+i}, v{VZP+4+i}")
    for n in range(16):
        half, r = n >> 3, n & 7
        x = X + 4 * n
        A(f"  s_waitcnt vmcnt({15 - (n & 1)})")
        for j in range(4):
            A(f"  v_cvt_f32_i32 v{x+j}, v{x+j}")
        sel = "op_sel:[0,1] op_sel_hi:[1,1]" if r & 1 else "op_sel_hi:[1,0]"
        for j in (0, 2):
            A(f"  v_pk_add_f32 {vr(x+j,2)}, {vr(x+j,2)}, {vr(VZ+(r&~1),2)} {sel} neg_lo:[0,1] neg_hi:[0,1]")
        if r & 1:
            for j in range(4):
                A(f"  v_cvt_pk_bf16_f32 v{AV+4*j+(r>>1)}, v{x-4+j}, v{x+j}")
            load(n - 1, "s36")
            load(n, "s36")
        if r == 7:
            for j in range(4):
                a = O + 16 * half + 4 * j
                A(f"  v_mfma_f32_16x16x32_bf16 {vr(a,4)}, {vr(AV+4*j,4)}, {vr(PB,4)}, {vr(a,4)}")
    for i in range(12):
        A(f"  v_mov_b32 v{PB+i}, v{PB+4+i}")
    A("  s_cmp_lg_u32 s36, 0x10000")
    A("  s_cbranch_scc1 L_vloop")
    stamp()
    ML = 0
    A(f"  v_and_b32 v{vT0}, 7, v{vC}")
    A(f"  v_lshlrev_b32 v{vT0}, 6, v{vT0}")
    A("  s_lshl_b32 s40, s3, 3")
    A(f"  v_add_u32 v{vY}, s40, v{vT0}")
    A(f"  ds_write_b64 v{vY}, {vr(vM,2)} offset:{ML}")
    A("  s_waitcnt vmcnt(0) lgkmcnt(0)")
    A("  s_barrier")
    stamp()
    for k in range(4):
        A(f"  ds_read_b128 {vr(S+4*k,4)}, v{vT0} offset:{ML+16*k}")
    A("  s_waitcnt lgkmcnt(0)")
    MM = vY; LL = vY + 1; FF = vY + 2
    A(f"  v_max3_f32 v{MM}, v{S}, v{S+2}, v{S+4}")
    A(f"  v_max3_f32 v{MM}, v{MM}, v{S+6}, v{S+8}")
    A(f"  v_max3_f32 v{MM}, v{MM}, v{S+10}, v{S+12}")
    A(f"  v_max_f32 v{MM}, v{MM}, v{S+14}")
    A(f"  v_sub_f32 v{FF}, v{vM}, v{MM}")
    A(f"  v_exp_f32 v{FF}, v{FF}")
    for k in range(8):
        A(f"  v_sub_f32 v{S+2*k}, v{S+2*k}, v{MM}")
    for k in range(8):
        A(f"  v_exp_f32 v{S+2*k}, v{S+2*k}")
    for half in range(2):
        for i in range(4):
            for j in range(4):
                A(f"  v_mul_f32 v{TMP+16*half+4*i+j}, v{FF}, v{O+16*half+4*j+i}")
    A(f"  v_mul_f32 v{LL}, v{S}, v{S+1}")
    for k in range(1, 8):
        A(f"  v_fmac_f32 v{LL}, v{S+2*k}, v{S+2*k+1}")
    A(f"  v_lshlrev_b32 v{vT0}, 3, v{vT0}")
    A(f"  v_lshl_add_u32 v{vT0}, v{vG}, 6, v{vT0}")
    A("  s_lshl_b32 s40, s3, 12")
    A(f"  v_add_u32 v{vT0}, s40, v{vT0}")
    A(f"  v_cmp_gt_u32 vcc, 8, v{vC}")
    A("  s_and_saveexec_b64 s[42:43], vcc")
    for half in range(2):
        for i in range(4):
            A(f"  ds_write_b128 v{vT0}, {vr(TMP+16*half+4*i,4)} offset:{512+256*half+16*i}")
    A("  s_mov_b64 exec, s[42:43]")
    A("  s_waitcnt lgkmcnt(0)")
    A("  s_barrier")
    A(f"  v_lshlrev_b32 v{vT0}, 3, v0")
    for k in range(8):
        A(f"  ds_read_b64 {vr(S+2*k,2)}, v{vT0} offset:{512+4096*k}")
    A("  s_lshl_b32 s40, s2, 12")
    A(f"  v_add_u32 v{vT0}, s40, v{vT0}")
    A("  s_and_b32 s41, s2, 63")
    A("  s_lshl_b32 s41, s41, 2")
    A("  s_add_u32 s41, s41, s34")
    A(f"  s_add_u32 s41, s41, {WS_M}")
    A(f"  v_lshl_add_u32 v{vOFF}, v0, 8, s41")
    A("  s_waitcnt lgkmcnt(0)")
    for k in (1, 3, 5, 7):
        A(f"  v_pk_add_f32 {vr(S+2*(k-1),2)}, {vr(S+2*(k-1),2)}, {vr(S+2*k,2)}")
    A(f"  v_pk_add_f32 {vr(S,2)}, {vr(S,2)}, {vr(S+4,2)}")
    A(f"  v_pk_add_f32 {vr(S+8,2)}, {vr(S+8,2)}, {vr(S+12,2)}")
    A(f"  v_pk_add_f32 {vr(S,2)}, {vr(S,2)}, {vr(S+8,2)}")
    A(f"  global_store_dwordx2 v{vT0}, {vr(S,2)}, s[22:23]")
    if o.stamp:
        A("  s_waitcnt vmcnt(0)")
        stamp()
        A("  s_getreg_b32 s44, hwreg(HW_REG_XCC_ID)")
        A("  s_getreg_b32 s45, hwreg(HW_REG_HW_ID)")
        A("  s_waitcnt lgkmcnt(0)")
        A(f"  v_mov_b32 v{S+8}, 0")
        for i in range(nst[0]):
            A(f"  v_writelane_b32 v{S+8}, s{60+2*i}, {i}")
        A(f"  v_writelane_b32 v{S+8}, s44, 14")
        A(f"  v_writelane_b32 v{S+8}, s45, 15")
        A("  s_lshl_b32 s44, s24, 6")
        A(f"  s_add_u32 s44, s44, {2<<20}")
        A(f"  v_lshl_add_u32 v{S+9}, v{vLANE}, 2, s44")
        A(f"  v_cmp_gt_u32 vcc, 16, v{vLANE}")
        A("  s_and_saveexec_b64 s[42:43], vcc")
        A(f"  global_store_dword v{S+9}, v{S+8}, s[22:23]")
        A("  s_mov_b64 exec, s[42:43]")
    A("  v_cmp_gt_u32 vcc, 8, v0")
    A("  s_and_saveexec_b64 s[42:43], vcc")
    A("  s_cbranch_execz L_end")
    A(f"  global_store_dword v{vOFF}, v{MM}, s[22:23]")
    A(f"  v_add_u32 v{vOFF}, {WS_L-WS_M}, v{vOFF}")
    A(f"  global_store_dword v{vOFF}, v{LL}, s[22:23]")
    A("L_end:")
    A("  s_endpgm")
    return K, NV, 96 if o.stamp else 48, 8 * KT + 512

def gen_combine(A, o):
    K = "kivi_combine_kernel"
    A(f".globl {K}")
    A(".p2align 8")
    A(f".type {K},@function")
    A(f"{K}:")
    A("  s_cmp_ge_u32 s2, 32")
    A("  s_cbranch_scc1 L_cend")
    if o.stamp:
        A("  s_memrealtime s[20:21]")
    A("  s_load_dwordx2 s[4:5], s[0:1], 56")
    A("  s_load_dwordx2 s[6:7], s[0:1], 72")
    A("  s_lshr_b32 s8, s2, 3")
    A("  s_and_b32 s9, s2, 7")
    A("  s_lshl_b32 s8, s8, 18")
    A("  s_lshl_b32 s9, s9, 9")
    A("  s_add_u32 s8, s8, s9")
    A("  v_and_b32 v1, 31, v0")
    A("  v_lshrrev_b32 v2, 5, v0")
    A("  v_and_b32 v3, 63, v0")
    A("  v_lshlrev_b32 v4, 15, v2")
    A("  v_lshl_add_u32 v4, v1, 4, v4")
    A("  v_add_u32 v4, s8, v4")
    A("  v_add_u32 v5, 0x2000, v4")
    A("  v_add_u32 v6, 0x4000, v4")
    A("  v_add_u32 v7, 0x6000, v4")
    A("  v_add_u32 v4, 0x1000, v4")
    A("  v_add_u32 v5, 0x1000, v5")
    A("  v_add_u32 v6, 0x1000, v6")
    A("  v_add_u32 v7, 0x1000, v7")
    A("  s_lshl_b32 s10, s2, 8")
    A(f"  s_add_u32 s10, s10, {WS_M}")
    A("  v_lshl_add_u32 v8, v3, 2, s10")
    A("  v_lshl_add_u32 v9, v2, 5, s10")
    A(f"  v_add_u32 v10, {WS_L-WS_M}, v8")
    A("  s_waitcnt lgkmcnt(0)")
    if o.stamp:
        A("  s_memrealtime s[22:23]")
    A("  global_load_dword v12, v8, s[6:7]")
    A("  global_load_dword v13, v10, s[6:7]")
    A("  global_load_dwordx4 v[16:19], v9, s[6:7]")
    A("  global_load_dwordx4 v[20:23], v9, s[6:7] offset:16")
    for k in range(8):
        A(f"  global_load_dwordx4 v[{24+4*k}:{27+4*k}], v{4+k//2}, s[6:7] offset:{-4096 if k % 2 == 0 else 0}")
    A("  s_waitcnt vmcnt(10)")
    def allreduce(op, v, t):
        for ror in (8, 4, 2, 1):
            A("  s_nop 1")
            A(f"  {op}_dpp v{v}, v{v}, v{v} row_ror:{ror} row_mask:0xf bank_mask:0xf")
        A(f"  v_mov_b32 v{t}, v{v}")
        A("  s_nop 1")
        A(f"  v_permlane16_swap_b32 v{v}, v{t}")
        A(f"  {op} v{v}, v{v}, v{t}")
        A(f"  v_mov_b32 v{t}, v{v}")
        A("  s_nop 1")
        A(f"  v_permlane32_swap_b32 v{v}, v{t}")
        A(f"  {op} v{v}, v{v}, v{t}")
    A("  v_mov_b32 v14, v12")
    allreduce("v_max_f32", 14, 15)
    A("  v_sub_f32 v12, v12, v14")
    A("  v_exp_f32 v12, v12")
    A("  s_nop 0")
    A("  v_mul_f32 v13, v12, v13")
    allreduce("v_add_f32", 13, 15)
    A("  s_waitcnt vmcnt(8)")
    for k in range(8):
        A(f"  v_sub_f32 v{16+k}, v{16+k}, v14")
    for k in range(8):
        A(f"  v_exp_f32 v{16+k}, v{16+k}")
    A("  v_rcp_f32 v13, v13")
    for k in range(8):
        A(f"  s_waitcnt vmcnt({7-k})")
        for j in range(4):
            if k == 0:
                A(f"  v_mul_f32 v{56+j}, v16, v{24+j}")
            else:
                A(f"  v_fmac_f32 v{56+j}, v{16+k}, v{24+4*k+j}")
    if o.stamp:
        A("  s_memrealtime s[24:25]")
    A("  v_lshlrev_b32 v4, 4, v0")
    A("  ds_write_b128 v4, v[56:59]")
    A("  s_waitcnt lgkmcnt(0)")
    A("  s_barrier")
    A("  v_cmp_gt_u32 vcc, 64, v0")
    A("  s_and_saveexec_b64 s[12:13], vcc")
    A("  s_cbranch_execz L_cend")
    A("  v_lshlrev_b32 v4, 3, v0")
    for k in range(8):
        A(f"  ds_read_b64 v[{16+2*k}:{17+2*k}], v4 offset:{512*k}")
    A("  s_lshl_b32 s10, s2, 8")
    A("  v_lshl_add_u32 v5, v0, 2, s10")
    A("  s_waitcnt lgkmcnt(0)")
    for k in (1, 3, 5, 7):
        A(f"  v_pk_add_f32 v[{16+2*(k-1)}:{17+2*(k-1)}], v[{16+2*(k-1)}:{17+2*(k-1)}], v[{16+2*k}:{17+2*k}]")
    A("  v_pk_add_f32 v[16:17], v[16:17], v[20:21]")
    A("  v_pk_add_f32 v[24:25], v[24:25], v[28:29]")
    A("  v_pk_add_f32 v[16:17], v[16:17], v[24:25]")
    A("  v_mul_f32 v16, v13, v16")
    A("  v_mul_f32 v17, v13, v17")
    A("  v_cvt_pk_bf16_f32 v16, v16, v17")
    A("  global_store_dword v5, v16, s[4:5]")
    if o.stamp:
        A("  s_waitcnt vmcnt(0)")
        A("  s_memrealtime s[26:27]")
        A("  s_waitcnt lgkmcnt(0)")
        A("  v_mov_b32 v20, 0")
        for i in range(4):
            A(f"  v_writelane_b32 v20, s{20+2*i}, {i}")
        A("  s_lshl_b32 s10, s2, 6")
        A(f"  s_add_u32 s10, s10, {(2<<20) + 2048*64}")
        A("  v_lshl_add_u32 v21, v0, 2, s10")
        A("  v_cmp_gt_u32 vcc, 16, v0")
        A("  s_and_saveexec_b64 s[12:13], vcc")
        A("  global_store_dword v21, v20, s[6:7]")
    A("L_cend:")
    A("  s_endpgm")
    return K, 60, 32, 4096

def generate(o):
    body = []
    A = body.append
    A('.amdgcn_target "amdgcn-amd-amdhsa--gfx950"')
    A(".text")
    k1 = gen_main(A, o)
    k2 = gen_combine(A, o)
    A('.section .rodata,"a"')
    for k, nv, ns, lds in (k1, k2):
        A(".p2align 6")
        descriptor(A, k, nv, ns)
    head = HEADER
    head += f"; @launch kernel={k1[0]} grid=(256,1,1) block=(512,1,1) lds={k1[3]}\n"
    head += f"; @launch kernel={k2[0]} grid=(32,1,1) block=(256,1,1) lds={k2[3]}\n"
    return head + "\n".join(body) + "\n"

if __name__ == "__main__":
    ap = argparse.ArgumentParser()
    ap.add_argument("-o", default="cdna_kernels/" + NAME + ".s")
    ap.add_argument("--flags", default="nt")
    ap.add_argument("--single", action="store_true")
    ap.add_argument("--stamp", action="store_true")
    o = ap.parse_args()
    open(o.o, "w").write(generate(o))
```

```python
import sys, argparse
NAME = "standalone__kv_cache_quant_int4_int2_kv_with_per_channel_or_per_token_scales__decode"
HEADER = open("cdna_kernels/" + NAME + ".s.ref").read().split("; Override launch")[0]

LOG2E = 0x3fb8aa3b
SCALE = 0x3db504f3
ROW = 288
KT = 32 * ROW
WS_M = 1 << 20
WS_L = WS_M + 8192
KBASE = 1024

def vr(base, n):
    return f"v[{base}:{base+n-1}]" if n > 1 else f"v{base}"

def descriptor(A, name, nv, ns):
    A(f".amdhsa_kernel {name}")
    A(f"  .amdhsa_next_free_vgpr {nv}")
    A(f"  .amdhsa_next_free_sgpr {ns}")
    A(f"  .amdhsa_accum_offset {(nv+3)//4*4}")
    A("  .amdhsa_group_segment_fixed_size 0")
    A("  .amdhsa_kernarg_size 80")
    A("  .amdhsa_user_sgpr_count 2")
    A("  .amdhsa_user_sgpr_kernarg_segment_ptr 1")
    A("  .amdhsa_system_sgpr_workgroup_id_x 1")
    A("  .amdhsa_float_denorm_mode_32 3")
    A(".end_amdhsa_kernel")


def single_tail(A, o, L):
    g = lambda n: L[n]
    vT0, vY, S, E, vOFF, vLW, vLR, vM, vLANE, X, stamp, nst, vC, vG = [g(n) for n in "vT0 vY S E vOFF vLW vLR vM vLANE X stamp nst vC vG".split()]
    R = 56
    A(f"  v_lshlrev_b32 v{vT0}, 4, v0")
    A(f"  v_and_b32 v{vY}, 7, v0")
    A(f"  v_lshlrev_b32 v{vY}, 5, v{vY}")
    A("  s_waitcnt lgkmcnt(0)")
    A("  s_barrier")
    stamp()
    A("  s_cmp_ge_u32 s3, 4")
    A("  s_cbranch_scc1 L_nosum")
    for k in range(8):
        A(f"  ds_read_b128 {vr(R+4*k,4)}, v{vT0} offset:{KBASE+4096*k}")
    A(f"  ds_read_b128 {vr(E,4)}, v{vY} offset:256")
    A(f"  ds_read_b128 {vr(E+4,4)}, v{vY} offset:272")
    A("  s_lshl_b32 s40, s2, 12")
    A(f"  v_add_u32 v{vT0}, s40, v{vT0}")
    A("  s_and_b32 s41, s2, 63")
    A("  s_lshl_b32 s41, s41, 2")
    A("  s_add_u32 s41, s41, s34")
    A(f"  s_add_u32 s41, s41, {WS_M}")
    A(f"  v_lshlrev_b32 v{vOFF}, 3, v{vY}")
    A(f"  v_and_b32 v{vLW}, 8, v0")
    A(f"  v_lshl_add_u32 v{vOFF}, v{vLW}, 10, v{vOFF}")
    A(f"  v_add_u32 v{vOFF}, s41, v{vOFF}")
    A(f"  v_cmp_gt_u32 vcc, 8, v0")
    A("  s_waitcnt lgkmcnt(2)")
    def add4(d, a, b):
        A(f"  v_pk_add_f32 {vr(d,2)}, {vr(a,2)}, {vr(b,2)}")
        A(f"  v_pk_add_f32 {vr(d+2,2)}, {vr(a+2,2)}, {vr(b+2,2)}")
    for k in (0, 2, 4, 6):
        add4(R+4*k, R+4*k, R+4*k+4)
    add4(R, R, R+8)
    add4(R+16, R+16, R+24)
    add4(R, R, R+16)
    A(f"  global_store_dwordx4 v{vT0}, {vr(R,4)}, s[22:23] sc1")
    A("  s_cmp_lg_u32 s3, 0")
    A("  s_cbranch_scc1 L_nosum")
    A("  s_waitcnt lgkmcnt(0)")
    A(f"  v_pk_add_f32 {vr(E,2)}, {vr(E,2)}, {vr(E+2,2)}")
    A(f"  v_pk_add_f32 {vr(E+4,2)}, {vr(E+4,2)}, {vr(E+6,2)}")
    A(f"  v_pk_add_f32 {vr(E,2)}, {vr(E,2)}, {vr(E+4,2)}")
    A(f"  v_add_f32 v{E}, v{E}, v{E+1}")
    A(f"  v_cndmask_b32 v{E}, v{E}, v{vM}, vcc")
    A(f"  v_cmp_gt_u32 vcc, 16, v0")
    A("  s_and_saveexec_b64 s[42:43], vcc")
    A(f"  global_store_dword v{vOFF}, v{E}, s[22:23] sc1")
    A("  s_mov_b64 exec, s[42:43]")
    A("L_nosum:")
    A("  s_waitcnt vmcnt(0)")
    A("  s_barrier")
    stamp()
    A("  s_cmp_lg_u32 s3, 0")
    A("  s_cbranch_scc1 L_wait")
    A("  s_lshl_b32 s40, s27, 6")
    A(f"  v_mov_b32 v{vY}, s40")
    A(f"  v_mov_b32 v{vY+1}, 1")
    A("  s_mov_b64 exec, 1")
    A(f"  global_atomic_add v{vY+2}, v{vY}, v{vY+1}, s[20:21] sc0 sc1")
    A("  s_waitcnt vmcnt(0)")
    A(f"  v_readfirstlane_b32 s44, v{vY+2}")
    A(f"  v_mov_b32 v{vY+3}, 512")
    A(f"  ds_write_b32 v{vY+3}, v{vY+2}")
    A(f"  s_cmp_lt_u32 s44, {64-o.helpers}")
    A("  s_cbranch_scc1 L_pdone")
    A("  s_cmp_eq_u32 s44, 63")
    A("  s_cbranch_scc1 L_pdone")
    A("L_poll:")
    A(f"  global_load_dword v{vY+2}, v{vY}, s[20:21] sc1")
    A("  s_waitcnt vmcnt(0)")
    A(f"  v_readfirstlane_b32 s45, v{vY+2}")
    A("  s_cmp_ge_u32 s45, 64")
    A("  s_cbranch_scc1 L_pdone")
    A("  s_sleep 1")
    A("  s_branch L_poll")
    A("L_pdone:")
    A("  s_mov_b64 exec, -1")
    A("  s_waitcnt lgkmcnt(0)")
    A("L_wait:")
    A("  s_barrier")
    A(f"  v_mov_b32 v{vY+3}, 512")
    A(f"  ds_read_b32 v{vY+2}, v{vY+3}")
    A("  v_and_b32 v1, 31, v0")
    A("  v_lshrrev_b32 v2, 5, v0")
    A("  v_and_b32 v3, 63, v0")
    A("  v_lshlrev_b32 v4, 14, v2")
    A("  v_lshl_add_u32 v4, v1, 4, v4")
    A("  s_waitcnt lgkmcnt(0)")
    A(f"  v_readfirstlane_b32 s44, v{vY+2}")
    stamp()
    A(f"  s_cmp_lt_u32 s44, {64-o.helpers}")
    A("  s_cbranch_scc1 L_fin")
    assert o.helpers == 8
    A("  s_sub_u32 s44, s44, 56")
    A("  s_lshl_b32 s45, s27, 18")
    A("  s_lshl_b32 s46, s44, 9")
    A("  s_add_u32 s45, s45, s46")
    A("  s_add_u32 s45, s45, 0x1000")
    A("  v_add_u32 v4, s45, v4")
    A("  v_add_u32 v5, 0x2000, v4")
    A("  s_lshl_b32 s46, s44, 8")
    A("  s_add_u32 s46, s46, s34")
    A(f"  s_add_u32 s47, s46, {WS_M}")
    A("  v_lshl_add_u32 v8, v3, 2, s47")
    A("  v_lshl_add_u32 v9, v2, 4, s47")
    A(f"  v_add_u32 v10, {WS_L-WS_M}, v8")
    A("  global_load_dword v12, v8, s[22:23] sc1")
    A("  global_load_dword v13, v10, s[22:23] sc1")
    A("  global_load_dwordx4 v[16:19], v9, s[22:23] sc1")
    for k in range(4):
        A(f"  global_load_dwordx4 v[{24+4*k}:{27+4*k}], v{4+k//2}, s[22:23] offset:{-4096 if k % 2 == 0 else 0} sc1")
    A("  s_waitcnt vmcnt(5)")
    def allreduce(op, v, t):
        for ror in (8, 4, 2, 1):
            A("  s_nop 1")
            A(f"  {op}_dpp v{v}, v{v}, v{v} row_ror:{ror} row_mask:0xf bank_mask:0xf")
        A(f"  v_mov_b32 v{t}, v{v}")
        A("  s_nop 1")
        A(f"  v_permlane16_swap_b32 v{v}, v{t}")
        A(f"  {op} v{v}, v{v}, v{t}")
        A(f"  v_mov_b32 v{t}, v{v}")
        A("  s_nop 1")
        A(f"  v_permlane32_swap_b32 v{v}, v{t}")
        A(f"  {op} v{v}, v{v}, v{t}")
    A("  v_mov_b32 v14, v12")
    allreduce("v_max_f32", 14, 15)
    A("  v_sub_f32 v12, v12, v14")
    A("  v_exp_f32 v12, v12")
    A("  s_waitcnt vmcnt(4)")
    for k in range(4):
        A(f"  v_sub_f32 v{16+k}, v{16+k}, v14")
    for k in range(4):
        A(f"  v_exp_f32 v{16+k}, v{16+k}")
    A("  v_mul_f32 v13, v12, v13")
    for k in range(4):
        A(f"  s_waitcnt vmcnt({3-k})")
        for j in range(4):
            if k == 0:
                A(f"  v_mul_f32 v{56+j}, v16, v{24+j}")
            else:
                A(f"  v_fmac_f32 v{56+j}, v{16+k}, v{24+4*k+j}")
    A("  v_lshlrev_b32 v4, 4, v0")
    A(f"  ds_write_b128 v4, v[56:59] offset:{KBASE}")
    allreduce("v_add_f32", 13, 15)
    A("  v_rcp_f32 v13, v13")
    A("  s_waitcnt lgkmcnt(0)")
    A("  s_barrier")
    A("  s_cmp_lg_u32 s3, 0")
    A("  s_cbranch_scc1 L_fin")
    A("  v_lshlrev_b32 v4, 3, v0")
    for k in range(16):
        A(f"  ds_read_b64 v[{16+2*k}:{17+2*k}], v4 offset:{KBASE+512*k}")
    A("  v_lshl_add_u32 v5, v0, 2, s46")
    A("  s_waitcnt lgkmcnt(0)")
    n = 16
    while n > 1:
        n //= 2
        for k in range(n):
            A(f"  v_pk_add_f32 v[{16+2*k}:{17+2*k}], v[{16+2*k}:{17+2*k}], v[{16+2*(k+n)}:{17+2*(k+n)}]")
    A("  v_mul_f32 v16, v13, v16")
    A("  v_mul_f32 v17, v13, v17")
    A("  v_cvt_pk_bf16_f32 v16, v16, v17")
    A("  global_store_dword v5, v16, s[18:19]")
    A("L_fin:")
    if o.stamp:
        A("  s_waitcnt vmcnt(0)")
        stamp()
        A("  s_getreg_b32 s48, hwreg(HW_REG_XCC_ID)")
        A("  s_waitcnt lgkmcnt(0)")
        A(f"  v_and_b32 v1, 63, v0")
        A(f"  v_mov_b32 v{S+8}, 0")
        for i in range(nst[0]):
            A(f"  v_writelane_b32 v{S+8}, s{60+2*i}, {i}")
        A(f"  v_writelane_b32 v{S+8}, s48, 14")
        A(f"  v_writelane_b32 v{S+8}, s44, 15")
        A("  s_lshl_b32 s48, s24, 6")
        A(f"  s_add_u32 s48, s48, {2<<20}")
        A(f"  v_lshl_add_u32 v{S+9}, v1, 2, s48")
        A(f"  v_cmp_gt_u32 vcc, 16, v1")
        A("  s_and_saveexec_b64 s[42:43], vcc")
        A(f"  global_store_dword v{S+9}, v{S+8}, s[22:23]")

def gen_main(A, o):
    ld = o.flags
    D = o.depth
    assert D in (4, 8, 16)
    nst = [0]
    def stamp():
        if o.stamp:
            A(f"  s_memrealtime s[{60+2*nst[0]}:{61+2*nst[0]}]")
            nst[0] += 1
    vLANE = 1; vG = 2; vC = 3; vOFF = 4; vLW = 5; vLR = 6; vT0 = 7
    vVS = 8; vVZ = 9
    vY = 10
    vM = 14; vL = 15
    E = 16
    S = 24
    KS = 56; KZ = 64
    BQ = 72
    AF = 88
    O = 104
    PB = 136
    VZP = 152
    VZ = 168
    X = 176
    VSP = KS
    TMP = S
    NV = X + 4 * D
    K = NAME + "_kernel" if o.single else "kivi_main_kernel"
    A(f".globl {K}")
    A(".p2align 8")
    A(f".type {K},@function")
    A(f"{K}:")
    A("  s_cmp_ge_u32 s2, 256")
    A("  s_cbranch_scc1 L_end")
    stamp()
    A("  s_load_dwordx16 s[4:19], s[0:1], 0")
    A("  s_load_dwordx4 s[20:23], s[0:1], 64")
    A(f"  v_lshrrev_b32 v{vT0}, 6, v0")
    A(f"  v_and_b32 v{vLANE}, 63, v0")
    A(f"  v_readfirstlane_b32 s3, v{vT0}")
    A(f"  v_lshrrev_b32 v{vG}, 4, v{vLANE}")
    A(f"  v_and_b32 v{vC}, 15, v{vLANE}")
    A(f"  v_lshlrev_b32 v{vOFF}, 12, v{vG}")
    A(f"  v_lshl_add_u32 v{vOFF}, v{vC}, 4, v{vOFF}")
    A("  s_lshl_b32 s24, s2, 3")
    A("  s_add_u32 s24, s24, s3")
    A("  s_lshl_b32 s25, s24, 16")
    A("  s_lshl_b32 s26, s24, 8")
    A(f"  v_lshl_add_u32 v{vT0}, v{vC}, 3, s26")
    A("  s_lshr_b32 s27, s2, 6")
    A("  s_lshl_b32 s34, s27, 11")
    A(f"  v_and_b32 v{vLW}, 7, v{vC}")
    A(f"  v_lshlrev_b32 v{vLW}, 8, v{vLW}")
    A(f"  v_lshl_add_u32 v{vLW}, v{vG}, 4, v{vLW}")
    A(f"  v_add_u32 v{vLW}, s34, v{vLW}")
    A(f"  v_lshl_add_u32 v{vLR}, v{vLANE}, 2, s26")
    A("  s_mov_b32 s30, 0x10000")
    A("  s_mov_b32 s31, 0x00020000")
    A("  s_waitcnt lgkmcnt(0)")
    stamp()
    A("  s_add_u32 s28, s6, s25")
    A("  s_addc_u32 s29, s7, 0")
    def load(slot, n, soff, fl=None):
        half, r = n >> 3, n & 7
        A(f"  buffer_load_dwordx4 {vr(X+4*slot,4)}, v{vOFF}, s[28:31], {soff} offen offset:{r*512+half*256} {ld if fl is None else fl}")
    def small():
        A(f"  global_load_dwordx2 {vr(S,2)}, v{vT0}, s[10:11]")
        A(f"  global_load_dwordx2 {vr(S+2,2)}, v{vT0}, s[10:11] offset:128")
        A(f"  global_load_dwordx2 {vr(S+4,2)}, v{vT0}, s[12:13]")
        A(f"  global_load_dwordx2 {vr(S+6,2)}, v{vT0}, s[12:13] offset:128")
        for s in range(4):
            A(f"  global_load_dwordx4 {vr(BQ+4*s,4)}, v{vLW}, s[4:5] offset:{64*s}")
        A(f"  global_load_dword v{vVS}, v{vLR}, s[14:15]")
        A(f"  global_load_dword v{vVZ}, v{vLR}, s[16:17]")
    if o.smallfirst:
        small()
    for n in range(D):
        load(n, n, "0")
    if not o.smallfirst:
        small()
    A("  s_add_u32 s32, s8, s25")
    A("  s_addc_u32 s33, s9, 0")
    A(f"  s_mul_i32 s35, s3, {KT}")
    A(f"  s_add_u32 s35, s35, {KBASE}")
    A(f"  v_mul_u32_u24 v{vLW}, {4*ROW}, v{vG}")
    A(f"  v_lshl_add_u32 v{vLW}, v{vC}, 3, v{vLW}")
    A(f"  v_add_u32 v{vLW}, s35, v{vLW}")
    A(f"  v_mul_u32_u24 v{vLR}, {ROW}, v{vC}")
    A(f"  v_lshl_add_u32 v{vLR}, v{vG}, 4, v{vLR}")
    A(f"  v_add_u32 v{vLR}, s35, v{vLR}")
    for i in range(32):
        A(f"  v_mov_b32 v{O+i}, 0")
    A("  s_mov_b32 s36, 0")
    A("  s_mov_b32 s37, 0xffff0000")
    A(f"  s_mov_b32 s38, {SCALE:#x}")
    A(f"  s_mov_b32 s39, {LOG2E:#x}")
    if o.smallfirst:
        A(f"  s_waitcnt vmcnt({D+6})")
    else:
        A(f"  s_waitcnt vmcnt(2)")
    for i in range(4):
        A(f"  v_lshlrev_b32 v{KS+2*i}, 16, v{S+i}")
        A(f"  v_and_b32 v{KS+2*i+1}, s37, v{S+i}")
        A(f"  v_lshlrev_b32 v{KZ+2*i}, 16, v{S+4+i}")
        A(f"  v_and_b32 v{KZ+2*i+1}, s37, v{S+4+i}")
    stamp()
    def advance_k():
        A("  s_add_u32 s36, s36, 0x4000")
        A("  s_cmp_lg_u32 s36, 0x10000")
        A("  s_cbranch_scc1 L_knosw")
        A("  s_mov_b32 s28, s32")
        A("  s_mov_b32 s29, s33")
        A("  s_mov_b32 s36, 0")
        A("L_knosw:")
    A("L_kloop:")
    def qk_reads(hf):
        for u in range(2):
            for s2 in range(2):
                s = 2 * hf + s2
                A(f"  ds_read_b128 {vr(AF+4*(2*u+s2),4)}, v{vLR} offset:{u*16*ROW+s*64}")
    def qk_mfma(hf):
        for s2 in range(2):
            for u in range(2):
                s = 2 * hf + s2
                c = "0" if s == 0 else vr(S+24+4*u, 4)
                A(f"  v_mfma_f32_16x16x32_bf16 {vr(S+24+4*u,4)}, {vr(AF+4*(2*u+s2),4)}, {vr(BQ+4*s,4)}, {c}")
    for n in range(16):
        half, r = n >> 3, n & 7
        x = X + 4 * (n % D)
        e = E + 4 * (n & 1)
        y = vY + 2 * (n & 1)
        if n == 16 - D:
            advance_k()
        A(f"  s_waitcnt vmcnt({D-1})")
        for j in range(4):
            A(f"  v_cvt_f32_i32 v{e+j}, v{x+j}")
        load(n % D, (n + D) % 16, "s36")
        for j in (0, 2):
            A(f"  v_pk_add_f32 {vr(e+j,2)}, {vr(e+j,2)}, {vr(KZ+4*half+j,2)} neg_lo:[0,1] neg_hi:[0,1]")
        for j in range(4):
            A(f"  v_cvt_pk_bf16_f32 v{e+j}, 0, v{e+j}")
        for j in (0, 2):
            A(f"  v_pk_mul_f32 {vr(e+j,2)}, {vr(e+j,2)}, {vr(KS+4*half+j,2)}")
        A(f"  v_cvt_pk_bf16_f32 v{y}, v{e}, v{e+1}")
        A(f"  v_cvt_pk_bf16_f32 v{y+1}, v{e+2}, v{e+3}")
        A(f"  ds_write_b64 v{vLW}, {vr(y,2)} offset:{(16*(r>>2)+(r&3))*ROW+half*128}")
        if n == 2:
            for i in range(24):
                A(f"  v_mov_b32 v{S+i}, v{S+8+i}")
        if n == 7:
            qk_reads(0)
        if n == 9:
            A("  s_waitcnt lgkmcnt(2)")
            qk_mfma(0)
        if n == 15:
            qk_reads(1)
            A("  s_waitcnt lgkmcnt(0)")
            qk_mfma(1)
    if o.tilebar:
        A("  s_barrier")
    A("  s_cmp_lg_u32 s36, 0")
    A("  s_cbranch_scc1 L_kloop")
    stamp()
    A(f"  v_lshl_add_u32 v{vT0}, v{vLANE}, 2, s35")
    A(f"  ds_write_b32 v{vT0}, v{vVS}")
    A(f"  ds_write_b32 v{vT0}, v{vVZ} offset:256")
    A(f"  v_lshl_add_u32 v{vT0}, v{vG}, 4, s35")
    for t in range(4):
        A(f"  ds_read_b128 {vr(VSP+4*t,4)}, v{vT0} offset:{64*t}")
    for t in range(4):
        A(f"  ds_read_b128 {vr(VZP+4*t,4)}, v{vT0} offset:{256+64*t}")
    for i in range(32):
        A(f"  v_cvt_pk_bf16_f32 v{S+i}, 0, v{S+i}")
    for i in range(32):
        A(f"  v_mul_f32 v{S+i}, s38, v{S+i}")
    for i in range(32):
        A(f"  v_cvt_pk_bf16_f32 v{S+i}, 0, v{S+i}")
    A(f"  v_max3_f32 v{vM}, v{S}, v{S+1}, v{S+2}")
    A(f"  v_max3_f32 v{vL}, v{S+3}, v{S+4}, v{S+5}")
    for i in range(6, 30, 4):
        A(f"  v_max3_f32 v{vM}, v{vM}, v{S+i}, v{S+i+1}")
        A(f"  v_max3_f32 v{vL}, v{vL}, v{S+i+2}, v{S+i+3}")
    A(f"  v_max3_f32 v{vM}, v{vM}, v{S+30}, v{S+31}")
    A(f"  v_max_f32 v{vM}, v{vM}, v{vL}")
    def xgroup(op, v, t):
        A(f"  v_mov_b32 v{t}, v{v}")
        A("  s_nop 1")
        A(f"  v_permlane16_swap_b32 v{v}, v{t}")
        A(f"  {op} v{v}, v{v}, v{t}")
        A(f"  v_mov_b32 v{t}, v{v}")
        A("  s_nop 1")
        A(f"  v_permlane32_swap_b32 v{v}, v{t}")
        A(f"  {op} v{v}, v{v}, v{t}")
    xgroup("v_max_f32", vM, vY)
    A(f"  v_and_b32 v{vT0}, 7, v{vC}")
    A(f"  v_lshlrev_b32 v{vT0}, 5, v{vT0}")
    A("  s_lshl_b32 s40, s3, 2")
    A(f"  v_add_u32 v{vY}, s40, v{vT0}")
    vF = 0
    def wgmax(dst):
        A(f"  ds_read_b128 {vr(E,4)}, v{vT0}")
        A(f"  ds_read_b128 {vr(E+4,4)}, v{vT0} offset:16")
        A("  s_waitcnt lgkmcnt(0)")
        A(f"  v_max3_f32 v{dst}, v{E}, v{E+1}, v{E+2}")
        A(f"  v_max3_f32 v{dst}, v{dst}, v{E+3}, v{E+4}")
        A(f"  v_max3_f32 v{dst}, v{dst}, v{E+5}, v{E+6}")
        A(f"  v_max_f32 v{dst}, v{dst}, v{E+7}")
    if o.latebar:
        A(f"  v_mul_f32 v{vM}, s39, v{vM}")
        A(f"  ds_write_b32 v{vY}, v{vM}")
        A("  s_waitcnt lgkmcnt(1)")
    else:
        A(f"  ds_write_b32 v{vY}, v{vM}")
        A("  s_waitcnt lgkmcnt(0)")
        A("  s_barrier")
        wgmax(vM)
    if not o.latebar:
        A(f"  v_mul_f32 v{vM}, s39, v{vM}")
    for i in range(32):
        A(f"  v_fma_f32 v{S+i}, v{S+i}, s39, -v{vM}")
    for i in range(32):
        A(f"  v_exp_f32 v{S+i}, v{S+i}")
    A(f"  v_add_f32 v{vL}, v{S}, v{S+1}")
    A(f"  v_add_f32 v{vY+2}, v{S+2}, v{S+3}")
    for i in range(4, 32, 2):
        A(f"  v_add_f32 v{vL}, v{vL}, v{S+i}")
        A(f"  v_add_f32 v{vY+2}, v{vY+2}, v{S+i+1}")
    A(f"  v_add_f32 v{vL}, v{vL}, v{vY+2}")
    for i in range(16):
        e = E + 2 * (i & 1)
        A(f"  v_lshlrev_b32 v{e}, 16, v{VSP+i}")
        A(f"  v_and_b32 v{e+1}, s37, v{VSP+i}")
        A(f"  v_pk_mul_f32 {vr(S+2*i,2)}, {vr(S+2*i,2)}, {vr(e,2)}")
        A(f"  v_cvt_pk_bf16_f32 v{PB+i}, v{S+2*i}, v{S+2*i+1}")
    xgroup("v_add_f32", vL, vY+2)
    if not o.latebar:
        A(f"  ds_write_b32 v{vY}, v{vL} offset:256")
    stamp()
    AV = AF
    A("L_vloop:")
    if o.latebar:
        A(f"  s_cmp_lg_u32 s36, {0xC000 if D < 16 else 0xC000}")
        A("  s_cbranch_scc1 L_nobar")
        A("  s_waitcnt lgkmcnt(0)")
        A("  s_barrier")
        wgmax(vVS)
        A(f"  v_sub_f32 v{vVZ}, v{vM}, v{vVS}")
        A(f"  v_exp_f32 v{vVZ}, v{vVZ}")
        A(f"  v_mov_b32 v{vM}, v{vVS}")
        A(f"  v_mul_f32 v{vL}, v{vL}, v{vVZ}")
        A(f"  ds_write_b32 v{vY}, v{vL} offset:256")
        A("L_nobar:")
    for i in range(4):
        A(f"  v_lshlrev_b32 v{VZ+2*i}, 16, v{VZP+i}")
        A(f"  v_and_b32 v{VZ+2*i+1}, s37, v{VZP+i}")
    for i in range(12):
        A(f"  v_mov_b32 v{VZP+i}, v{VZP+4+i}")
    for n in range(16):
        half, r = n >> 3, n & 7
        x = X + 4 * (n % D)
        e = E + 4 * (n & 1)
        if n == 16 - D:
            A("  s_add_u32 s36, s36, 0x4000")
        A(f"  s_waitcnt vmcnt({D-1})")
        for j in range(4):
            A(f"  v_cvt_f32_i32 v{e+j}, v{x+j}")
        load(n % D, (n + D) % 16, "s36", o.vflags)
        sel = "op_sel:[0,1] op_sel_hi:[1,1]" if r & 1 else "op_sel_hi:[1,0]"
        for j in (0, 2):
            A(f"  v_pk_add_f32 {vr(e+j,2)}, {vr(e+j,2)}, {vr(VZ+(r&~1),2)} {sel} neg_lo:[0,1] neg_hi:[0,1]")
        if r & 1:
            for j in range(4):
                A(f"  v_cvt_pk_bf16_f32 v{AV+4*j+(r>>1)}, v{E+j}, v{E+4+j}")
        if r == 7:
            A("  s_nop 0")
            for j in range(4):
                a = O + 16 * half + 4 * j
                A(f"  v_mfma_f32_16x16x32_bf16 {vr(a,4)}, {vr(AV+4*j,4)}, {vr(PB,4)}, {vr(a,4)}")
    for i in range(12):
        A(f"  v_mov_b32 v{PB+i}, v{PB+4+i}")
    if o.tilebar:
        A("  s_cmp_eq_u32 s36, 0x10000")
        A("  s_cbranch_scc1 L_vdone")
        A("  s_barrier")
        A("  s_branch L_vloop")
        A("L_vdone:")
    else:
        A("  s_cmp_lg_u32 s36, 0x10000")
        A("  s_cbranch_scc1 L_vloop")
    stamp()
    A(f"  v_cmp_gt_u32 vcc, 8, v{vC}")
    A(f"  v_lshlrev_b32 v{vT0}, 4, v{vT0}")
    A(f"  v_lshl_add_u32 v{vT0}, v{vG}, 6, v{vT0}")
    A(f"  v_and_b32 v{vY}, 8, v{vC}")
    A(f"  v_lshl_add_u32 v{vT0}, v{vY}, 5, v{vT0}")
    A("  s_lshl_b32 s40, s3, 12")
    A(f"  v_add_u32 v{vT0}, s40, v{vT0}")
    for i in range(4):
        for j in range(4):
            A(f"  v_cndmask_b32 v{TMP+4*i+j}, v{O+16+4*j+i}, v{O+4*j+i}, vcc")
    if o.latebar:
        for i in range(16):
            A(f"  v_mul_f32 v{TMP+i}, v{vVZ}, v{TMP+i}")
    for i in range(4):
        A(f"  ds_write_b128 v{vT0}, {vr(TMP+4*i,4)} offset:{KBASE+16*i}")
    if o.single:
        single_tail(A, o, locals())
    else:
        A(f"  v_lshlrev_b32 v{vT0}, 3, v0")
        A(f"  v_lshlrev_b32 v{vY}, 5, v0")
        A("  s_waitcnt lgkmcnt(0)")
        A("  s_barrier")
        stamp()
        for k in range(8):
            A(f"  ds_read_b64 {vr(S+2*k,2)}, v{vT0} offset:{KBASE+4096*k}")
        A(f"  ds_read_b128 {vr(E,4)}, v{vY} offset:256")
        A(f"  ds_read_b128 {vr(E+4,4)}, v{vY} offset:272")
        A("  s_lshl_b32 s40, s2, 12")
        A(f"  v_add_u32 v{vT0}, s40, v{vT0}")
        A("  s_and_b32 s41, s2, 63")
        A("  s_lshl_b32 s41, s41, 2")
        A("  s_add_u32 s41, s41, s34")
        A(f"  s_add_u32 s41, s41, {WS_M}")
        A(f"  v_lshl_add_u32 v{vOFF}, v0, 8, s41")
        A(f"  v_add_u32 v{vLW}, {WS_L-WS_M}, v{vOFF}")
        A("  s_waitcnt lgkmcnt(2)")
        for k in (1, 3, 5, 7):
            A(f"  v_pk_add_f32 {vr(S+2*(k-1),2)}, {vr(S+2*(k-1),2)}, {vr(S+2*k,2)}")
        A(f"  v_pk_add_f32 {vr(S,2)}, {vr(S,2)}, {vr(S+4,2)}")
        A(f"  v_pk_add_f32 {vr(S+8,2)}, {vr(S+8,2)}, {vr(S+12,2)}")
        A(f"  v_pk_add_f32 {vr(S,2)}, {vr(S,2)}, {vr(S+8,2)}")
        A(f"  global_store_dwordx2 v{vT0}, {vr(S,2)}, s[22:23] {o.stflags}")
        if o.stamp:
            A("  s_waitcnt vmcnt(0)")
            stamp()
            A("  s_getreg_b32 s44, hwreg(HW_REG_XCC_ID)")
            A("  s_getreg_b32 s45, hwreg(HW_REG_HW_ID)")
            A("  s_waitcnt lgkmcnt(0)")
            A(f"  v_mov_b32 v{S+8}, 0")
            for i in range(nst[0]):
                A(f"  v_writelane_b32 v{S+8}, s{60+2*i}, {i}")
            A(f"  v_writelane_b32 v{S+8}, s44, 14")
            A(f"  v_writelane_b32 v{S+8}, s45, 15")
            A("  s_lshl_b32 s44, s24, 6")
            A(f"  s_add_u32 s44, s44, {2<<20}")
            A(f"  v_lshl_add_u32 v{S+9}, v{vLANE}, 2, s44")
            A(f"  v_cmp_gt_u32 vcc, 16, v{vLANE}")
            A("  s_and_saveexec_b64 s[42:43], vcc")
            A(f"  global_store_dword v{S+9}, v{S+8}, s[22:23]")
            A("  s_mov_b64 exec, s[42:43]")
        A("  v_cmp_gt_u32 vcc, 8, v0")
        A("  s_and_saveexec_b64 s[42:43], vcc")
        A("  s_cbranch_execz L_end")
        A("  s_waitcnt lgkmcnt(0)")
        A(f"  v_pk_add_f32 {vr(E,2)}, {vr(E,2)}, {vr(E+2,2)}")
        A(f"  v_pk_add_f32 {vr(E+4,2)}, {vr(E+4,2)}, {vr(E+6,2)}")
        A(f"  v_pk_add_f32 {vr(E,2)}, {vr(E,2)}, {vr(E+4,2)}")
        A(f"  v_add_f32 v{E}, v{E}, v{E+1}")
        A(f"  global_store_dword v{vOFF}, v{vM}, s[22:23] {o.stflags}")
        A(f"  global_store_dword v{vLW}, v{E}, s[22:23] {o.stflags}")
    A("L_end:")
    A("  s_endpgm")
    return K, NV, 96 if o.stamp else 56, KBASE + 8 * KT

import gen as G1
def generate(o):
    body = []
    A = body.append
    A('.amdgcn_target "amdgcn-amd-amdhsa--gfx950"')
    A(".text")
    k1 = gen_main(A, o)
    ks = [k1] if o.single else [k1, G1.gen_combine(A, o)]
    A('.section .rodata,"a"')
    for k, nv, ns, lds in ks:
        A(".p2align 6")
        descriptor(A, k, nv, ns)
    head = HEADER
    if o.single:
        head += f"; @launch grid=(256,1,1) block=(512,1,1) lds={k1[3]}\n"
    else:
        k2 = ks[1]
        head += f"; @launch kernel={k1[0]} grid=(256,1,1) block=(512,1,1) lds={k1[3]}\n"
        head += f"; @launch kernel={k2[0]} grid=(32,1,1) block=(256,1,1) lds={k2[3]}\n"
    return head + "\n".join(body) + "\n"

if __name__ == "__main__":
    ap = argparse.ArgumentParser()
    ap.add_argument("-o", default="cdna_kernels/" + NAME + ".s")
    ap.add_argument("--flags", default="nt")
    ap.add_argument("--stflags", default="")
    ap.add_argument("--vflags", default=None)
    ap.add_argument("--single", action="store_true")
    ap.add_argument("--stamp", action="store_true")
    ap.add_argument("--depth", type=int, default=8)
    ap.add_argument("--tilebar", action="store_true")
    ap.add_argument("--smallfirst", action="store_true")
    ap.add_argument("--latebar", action="store_true")
    ap.add_argument("--helpers", type=int, default=8)
    o = ap.parse_args()
    open(o.o, "w").write(generate(o))
```

```python
import sys, re
src = open(sys.argv[1]).read()
nst = int(sys.argv[3])
i = src.index("L_fin:\n")
j = src.index("L_end:\n")
body = ["L_fin:", "  s_waitcnt vmcnt(0)", f"  s_memrealtime s[{70+2*(nst-1)}:{71+2*(nst-1)}]", "  s_waitcnt lgkmcnt(0)",
        "  s_cmp_lg_u32 s3, 0", "  s_cbranch_scc1 L_end",
        "  s_mov_b64 exec, 1",
        "  s_and_b32 s66, s2, 7", "  s_lshr_b32 s67, s2, 3", "  s_and_b32 s67, s67, 7", "  s_cmp_eq_u32 s66, s67", "  s_cselect_b32 s66, 1, 0",
        f"  s_cmp_lg_u32 s{70+2*(nst-2)}, 0", "  s_cselect_b32 s66, 1, s66" if sys.argv[4] == "h" else "  s_nop 0",
        "  s_cmp_eq_u32 s66, 0", "  s_cbranch_scc1 L_end",
        "  v_mov_b32 v1, 0"]
k = 1
for s in range(nst):
    body += [f"  v_mov_b32 v2, s{70+2*s}", f"  global_atomic_umax v1, v2, s[20:21] offset:{4*k} sc1"]
    k += 1
for s in (0, 3):
    body += [f"  s_not_b32 s66, s{70+2*s}", "  v_mov_b32 v2, s66", f"  global_atomic_umax v1, v2, s[20:21] offset:{4*k} sc1"]
    k += 1
body += ["  v_mov_b32 v2, s94", f"  global_atomic_umax v1, v2, s[20:21] offset:{4*k} sc1"]
src = src[:i] + "\n".join(body) + "\n" + src[j:]
src = src.replace("  s_mov_b32 s82, 0\n", "  s_mov_b32 s82, 0\n  s_mov_b32 s94, 0\n")
if "s_mov_b32 s94, 0" not in src:
    src = src.replace("  s_memtime s[90:91]\n", "  s_memtime s[90:91]\n  s_mov_b32 s94, 0\n")
src = src.replace("L_gather:\n", "L_gather:\n  s_add_u32 s94, s94, 1\n")
src = src.replace("L_poll:\n", "L_poll:\n  s_add_u32 s94, s94, 1\n")
open(sys.argv[2], "w").write(src)
```

```python
import sys, argparse
NAME = "standalone__kv_cache_quant_int4_int2_kv_with_per_channel_or_per_token_scales__decode"
HEADER = open("cdna_kernels/" + NAME + ".s.ref").read().split("; Override launch")[0]

LOG2E = 0x3fb8aa3b
SCALE = 0x3db504f3
ROW = 288
KT = 8 * ROW
WS_M = 1 << 20
WS_L = WS_M + 8192
WS_PC = WS_M + 65536
L_ML = 0
L_TK = 256
L_SLOT = 512
L_K = 1024
L_O = L_K + 4 * KT
L_SC = L_O + 16384
SCA = 12 * 512
LDS_BYTES = L_SC + 4 * SCA
INV = 2048


def vr(base, n):
    return f"v[{base}:{base+n-1}]" if n > 1 else f"v{base}"


def descriptor(A, name, nv, ns):
    A(f".amdhsa_kernel {name}")
    A(f"  .amdhsa_next_free_vgpr {nv}")
    A(f"  .amdhsa_next_free_sgpr {ns}")
    A(f"  .amdhsa_accum_offset {(nv+3)//4*4}")
    A("  .amdhsa_group_segment_fixed_size 0")
    A("  .amdhsa_kernarg_size 80")
    A("  .amdhsa_user_sgpr_count 2")
    A("  .amdhsa_user_sgpr_kernarg_segment_ptr 1")
    A("  .amdhsa_system_sgpr_workgroup_id_x 1")
    A("  .amdhsa_float_denorm_mode_32 3")
    A(".end_amdhsa_kernel")


def gen_main(A, o):
    ld = o.flags
    NS = o.ns
    POOL = (32 - NS) * 64
    dyn = POOL > 0
    KB = NS - 4 - o.la if dyn else 31
    nst = [0]

    def stamp():
        if o.stamp:
            A(f"  s_memrealtime s[{70+2*nst[0]}:{71+2*nst[0]}]")
            nst[0] += 1
    vLANE = 1; vG = 2; vC = 3; vOFF = 4; vLW = 5; vLR = 6; vT0 = 7
    vKO = 8; vVO = 9
    vY = 10
    vM = 14; vL = 15
    E = 16
    S = 24
    PB = 28
    vKA = 30; vVA = 31
    VS = 32; VZ = 34
    KS = 36; KZ = 44
    BQ = 52
    AF = 68
    AV = 84
    O = 100
    vMR = 132
    vSL = 133
    vAML = 134; vAOW = 135; vAMR = 136; vAOR = 137; vAWS = 138; vAWM = 139
    RAW = 140
    MK = 148
    X = 152
    vTK = 184; vCNT = 185
    NV = 186
    K = NAME + "_kernel" if o.tail != "2k" else "kivi_main_kernel"
    st = "" if o.tail == "2k" else "sc1"
    A(f".globl {K}")
    A(".p2align 8")
    A(f".type {K},@function")
    A(f"{K}:")
    A("  s_cmp_ge_u32 s2, 256")
    A("  s_cbranch_scc1 L_end")
    stamp()
    if o.stamp:
        A("  s_memtime s[90:91]")
        A("  s_mov_b32 s82, 0")
        A("  s_mov_b32 s98, 0")
    A("  s_load_dwordx16 s[4:19], s[0:1], 0")
    A("  s_load_dwordx4 s[20:23], s[0:1], 64")
    A(f"  v_lshrrev_b32 v{vT0}, 6, v0")
    A(f"  v_and_b32 v{vLANE}, 63, v0")
    A(f"  v_readfirstlane_b32 s3, v{vT0}")
    A(f"  v_lshrrev_b32 v{vG}, 4, v{vLANE}")
    A(f"  v_and_b32 v{vC}, 15, v{vLANE}")
    A(f"  v_lshlrev_b32 v{vOFF}, 12, v{vG}")
    A(f"  v_lshl_add_u32 v{vOFF}, v{vC}, 4, v{vOFF}")
    A(f"  v_lshl_add_u32 v{vOFF}, v{vT0}, 10, v{vOFF}")
    A(f"  v_lshlrev_b32 v{vKA}, 4, v{vLANE}")
    A("  s_lshr_b32 s24, s2, 6")
    A("  s_and_b32 s25, s2, 63")
    A("  s_lshl_b32 s26, s24, 25")
    A("  s_lshl_b32 s27, s24, 17")
    A("  s_lshl_b32 s53, s25, 5")
    A("  s_lshl_b32 s56, s25, 19")
    A("  s_lshl_b32 s58, s25, 11")
    A("  s_mov_b32 s59, 0xffff0000")
    A("  s_lshl_b32 s63, s24, 11")
    A("  s_mov_b32 s30, 0x2000000")
    A("  s_mov_b32 s31, 0x00020000")
    A(f"  v_and_b32 v{vLW}, 7, v{vC}")
    A(f"  v_lshlrev_b32 v{vLW}, 8, v{vLW}")
    A(f"  v_lshl_add_u32 v{vLW}, v{vG}, 4, v{vLW}")
    A(f"  v_add_u32 v{vLW}, s63, v{vLW}")
    A("  s_mov_b32 s34, 0x2000000")
    A("  s_mov_b32 s35, 0x00020000")
    A("  s_mov_b32 s38, 0x20000")
    A("  s_mov_b32 s39, 0x00020000")
    A("  s_waitcnt lgkmcnt(0)")
    stamp()
    A("  s_add_u32 s28, s6, s26")
    A("  s_addc_u32 s29, s7, 0")

    def big(i, soff):
        r, half = i & 1, (i >> 1) & 1
        srd = 28 if i < 4 else 32
        A(f"  buffer_load_dwordx4 {vr(X+4*i,4)}, v{vOFF}, s[{srd}:{srd+3}], {soff} offen offset:{r*512+half*256} {ld}")
    for i in range(4):
        big(i, "s56")
    A("  s_cmp_eq_u32 s3, 1")
    A("  s_cselect_b32 s36, s12, s10")
    A("  s_cselect_b32 s37, s13, s11")
    A("  s_cmp_eq_u32 s3, 2")
    A("  s_cselect_b32 s36, s14, s36")
    A("  s_cselect_b32 s37, s15, s37")
    A("  s_cmp_eq_u32 s3, 3")
    A("  s_cselect_b32 s36, s16, s36")
    A("  s_cselect_b32 s37, s17, s37")
    A("  s_add_u32 s36, s36, s27")
    A("  s_addc_u32 s37, s37, 0")
    A("  s_add_u32 s32, s8, s26")
    A("  s_addc_u32 s33, s9, 0")
    for i in range(2):
        A(f"  buffer_load_dwordx4 {vr(RAW+4*i,4)}, v{vKA}, s[36:39], s58 offen offset:{1024*i} {ld}")
    for s in range(4):
        A(f"  global_load_dwordx4 {vr(BQ+4*s,4)}, v{vLW}, s[4:5] offset:{64*s}")
    for i in range(4, 8):
        big(i, "s56")
    A(f"  v_lshlrev_b32 v{vKO}, 4, v{vC}")
    A(f"  v_add_u32 v{vKO}, {L_SC}, v{vKO}")
    A(f"  v_lshlrev_b32 v{vVO}, 5, v{vG}")
    A(f"  v_lshl_add_u32 v{vVO}, v{vT0}, 3, v{vVO}")
    A(f"  v_add_u32 v{vVO}, {L_SC+2*SCA}, v{vVO}")
    A(f"  s_mul_i32 s62, s3, {KT}")
    A(f"  s_add_u32 s62, s62, {L_K}")
    A(f"  v_mul_u32_u24 v{vLW}, {2*ROW}, v{vG}")
    A(f"  v_lshl_add_u32 v{vLW}, v{vC}, 3, v{vLW}")
    A(f"  v_add_u32 v{vLW}, s62, v{vLW}")
    A(f"  v_lshrrev_b32 v{vLR}, 2, v{vC}")
    A(f"  v_lshlrev_b32 v{vLR}, 1, v{vLR}")
    A(f"  v_and_b32 v{vY}, 1, v{vC}")
    A(f"  v_add_u32 v{vLR}, v{vLR}, v{vY}")
    A(f"  v_mul_u32_u24 v{vLR}, {ROW}, v{vLR}")
    A(f"  v_lshl_add_u32 v{vLR}, v{vG}, 4, v{vLR}")
    A(f"  v_add_u32 v{vLR}, s62, v{vLR}")
    A(f"  v_and_b32 v{vY}, 7, v{vC}")
    A(f"  v_lshlrev_b32 v{vAML}, 5, v{vY}")
    A(f"  v_lshl_add_u32 v{vAML}, v{vT0}, 3, v{vAML}")
    A(f"  v_lshlrev_b32 v{vAOW}, 9, v{vY}")
    A(f"  v_lshl_add_u32 v{vAOW}, v{vG}, 6, v{vAOW}")
    A(f"  v_and_b32 v{vY}, 8, v{vC}")
    A(f"  v_lshl_add_u32 v{vAOW}, v{vY}, 5, v{vAOW}")
    A(f"  v_lshl_add_u32 v{vAOW}, v{vT0}, 12, v{vAOW}")
    A(f"  v_add_u32 v{vAOW}, {L_O}, v{vAOW}")
    A(f"  v_lshrrev_b32 v{vY}, 5, v0")
    A(f"  v_lshlrev_b32 v{vAMR}, 5, v{vY}")
    A(f"  v_lshlrev_b32 v{vAOR}, 4, v0")
    A("  s_lshl_b32 s64, s2, 12")
    A(f"  v_add_u32 v{vAWS}, s64, v{vAOR}")
    A(f"  v_add_u32 v{vAOR}, {L_O}, v{vAOR}")
    A("  s_lshl_b32 s64, s25, 2")
    A("  s_add_u32 s64, s64, s63")
    A(f"  s_add_u32 s64, s64, {WS_M}")
    A(f"  v_lshlrev_b32 v{vAWM}, 8, v{vY}")
    A(f"  v_and_b32 v{vY}, 1, v0")
    A(f"  v_lshl_add_u32 v{vAWM}, v{vY}, 13, v{vAWM}")
    A(f"  v_add_u32 v{vAWM}, s64, v{vAWM}")
    A(f"  v_mov_b32 v{vTK}, {L_TK}")
    for i in range(32):
        A(f"  v_mov_b32 v{O+i}, 0")
    for i in range(8):
        A(f"  v_mov_b32 v{AV+2*i+1}, 0")
    A(f"  v_mov_b32 v{PB+1}, 0")
    A(f"  v_mov_b32 v{vL}, 0")
    A(f"  v_mov_b32 v{vMR}, 0xff7fffff")
    A(f"  v_mov_b32 v{vM}, 0xff7fffff")
    A(f"  v_mov_b32 v{vSL}, {L_SLOT}")
    A("  s_mov_b32 s52, 0")
    A(f"  s_mov_b32 s60, {SCALE:#x}")
    A(f"  s_mov_b32 s61, {LOG2E:#x}")
    A(f"  s_mul_i32 s58, s3, {SCA}")
    A(f"  s_add_u32 s58, s58, {L_SC}")
    A(f"  v_lshl_add_u32 v{vKA}, v{vLANE}, 5, s58")
    A("  s_waitcnt vmcnt(8)")
    for i in range(2):
        for j in range(4):
            A(f"  v_lshlrev_b32 v{KS+8*i+2*j}, 16, v{RAW+4*i+j}")
            A(f"  v_and_b32 v{KS+8*i+2*j+1}, s59, v{RAW+4*i+j}")
        A(f"  ds_write_b128 v{vKA}, {vr(KS+8*i,4)} offset:{2048*i}")
        A(f"  ds_write_b128 v{vKA}, {vr(KS+8*i+4,4)} offset:{2048*i+16}")
    A("  s_waitcnt vmcnt(4) lgkmcnt(0)")
    A("  s_barrier")
    stamp()

    def xgroup(op, v, t):
        A(f"  v_mov_b32 v{t}, v{v}")
        A("  s_nop 1")
        A(f"  v_permlane16_swap_b32 v{v}, v{t}")
        A(f"  {op} v{v}, v{v}, v{t}")
        A(f"  v_mov_b32 v{t}, v{v}")
        A("  s_nop 1")
        A(f"  v_permlane32_swap_b32 v{v}, v{t}")
        A(f"  {op} v{v}, v{v}, v{t}")

    A("L_unit:")
    A("  s_add_u32 s54, s53, 1")
    A("  s_lshr_b32 s64, s52, 2")
    A("  s_lshl_b32 s64, s64, 9")
    A("  s_lshl_b32 s65, s52, 7")
    A("  s_cmp_lt_u32 s52, 31")
    A(f"  s_cselect_b32 s54, s54, {INV}")
    A(f"  v_add_u32 v{vKA}, s64, v{vKO}")
    A(f"  v_add_u32 v{vVA}, s65, v{vVO}")
    A(f"  ds_read_b128 {vr(KZ,4)}, v{vKA} offset:{SCA}")
    A(f"  ds_read_b128 {vr(KS,4)}, v{vKA}")
    A(f"  ds_read_b128 {vr(KZ+4,4)}, v{vKA} offset:{SCA+256}")
    A(f"  ds_read_b128 {vr(KS+4,4)}, v{vKA} offset:256")
    A(f"  ds_read_b64 {vr(VS,2)}, v{vVA}")
    A(f"  ds_read_b64 {vr(VZ,2)}, v{vVA} offset:{SCA}")
    A("  s_lshl_b32 s56, s54, 14")

    def mfma_qk(ss):
        for sx in ss:
            c = "0" if sx == 0 else vr(S, 4)
            A(f"  v_mfma_f32_16x16x32_bf16 {vr(S,4)}, {vr(AF+4*sx,4)}, {vr(BQ+4*sx,4)}, {c}")
    for i in range(4):
        r, half = i & 1, i >> 1
        x = X + 4 * i
        e = E + 4 * (i & 1)
        y = vY + 2 * (i & 1)
        A("  s_waitcnt vmcnt(7)")
        for j in range(4):
            A(f"  v_cvt_f32_i32 v{e+j}, v{x+j}")
        big(i, "s56")
        if i == 0:
            A("  s_waitcnt lgkmcnt(0)")
        for j in (0, 2):
            A(f"  v_pk_add_f32 {vr(e+j,2)}, {vr(e+j,2)}, {vr(KZ+4*half+j,2)} neg_lo:[0,1] neg_hi:[0,1]")
        for j in range(4):
            A(f"  v_cvt_pk_bf16_f32 v{e+j}, 0, v{e+j}")
        for j in (0, 2):
            A(f"  v_pk_mul_f32 {vr(e+j,2)}, {vr(e+j,2)}, {vr(KS+4*half+j,2)}")
        A(f"  v_cvt_pk_bf16_f32 v{y}, v{e}, v{e+1}")
        A(f"  v_cvt_pk_bf16_f32 v{y+1}, v{e+2}, v{e+3}")
        A(f"  ds_write_b64 v{vLW}, {vr(y,2)} offset:{r*ROW+half*128}")
        if i & 1:
            for sx in (2 * half, 2 * half + 1):
                A(f"  ds_read_b128 {vr(AF+4*sx,4)}, v{vLR} offset:{sx*64}")
    for i in range(4):
        r, half = i & 1, i >> 1
        x = X + 16 + 4 * i
        e = E + 4 * (i & 1)
        A("  s_waitcnt vmcnt(7)")
        for j in range(4):
            A(f"  v_cvt_f32_i32 v{e+j}, v{x+j}")
        big(4 + i, "s56")
        sel = "op_sel:[0,1] op_sel_hi:[1,1]" if r else "op_sel_hi:[1,0]"
        for j in (0, 2):
            A(f"  v_pk_add_f32 {vr(e+j,2)}, {vr(e+j,2)}, {vr(VZ,2)} {sel} neg_lo:[0,1] neg_hi:[0,1]")
        if r:
            for j in range(4):
                A(f"  v_cvt_pk_bf16_f32 v{AV+8*half+2*j}, v{E+j}, v{E+4+j}")
        if i == 0:
            A("  s_waitcnt lgkmcnt(4)")
            mfma_qk((0, 1))
        if i == 1:
            A("  s_waitcnt lgkmcnt(0)")
            mfma_qk((2, 3))
    for j in range(2):
        A(f"  v_cvt_pk_bf16_f32 v{S+j}, 0, v{S+j}")
    for j in range(2):
        A(f"  v_mul_f32 v{S+j}, s60, v{S+j}")
    for j in range(2):
        A(f"  v_cvt_pk_bf16_f32 v{S+j}, 0, v{S+j}")
    A(f"  v_max_f32 v{S+2}, v{S}, v{S+1}")
    A(f"  v_cmp_gt_f32 vcc, v{S+2}, v{vMR}")
    A("  s_cbranch_vccz L_nomax")
    xgroup("v_max_f32", S + 2, S + 3)
    A(f"  v_max_f32 v{vMR}, v{vMR}, v{S+2}")
    A(f"  v_mul_f32 v{S+2}, s61, v{vMR}")
    A(f"  v_sub_f32 v{S+3}, v{vM}, v{S+2}")
    A(f"  v_exp_f32 v{S+3}, v{S+3}")
    A(f"  v_mov_b32 v{vM}, v{S+2}")
    A(f"  v_mul_f32 v{vL}, v{vL}, v{S+3}")
    for i in range(16):
        A(f"  v_pk_mul_f32 {vr(O+2*i,2)}, {vr(O+2*i,2)}, {vr(S+2,2)} op_sel:[0,1] op_sel_hi:[1,1]")
    A("L_nomax:")
    for j in range(2):
        A(f"  v_fma_f32 v{S+j}, v{S+j}, s61, -v{vM}")
    for j in range(2):
        A(f"  v_exp_f32 v{S+j}, v{S+j}")
    A("  s_add_u32 s52, s52, 1")
    A(f"  v_add_f32 v{vL}, v{vL}, v{S}")
    A(f"  v_add_f32 v{vL}, v{vL}, v{S+1}")
    A(f"  v_pk_mul_f32 {vr(S,2)}, {vr(S,2)}, {vr(VS,2)}")
    A(f"  v_cvt_pk_bf16_f32 v{PB}, v{S}, v{S+1}")
    A("  s_mov_b32 s53, s54")
    A(f"  s_cmp_lt_u32 s54, {INV}")
    for h in range(2):
        for j in range(4):
            a = O + 16 * h + 4 * j
            A(f"  v_mfma_f32_16x16x16_bf16 {vr(a,4)}, {vr(AV+8*h+2*j,2)}, {vr(PB,2)}, {vr(a,4)}")
    A("  s_cbranch_scc1 L_unit")
    stamp()
    if o.stamp:
        A("  s_memtime s[92:93]")
    TMP = KS
    R = BQ
    xgroup("v_add_f32", vL, vY)
    A(f"  v_cmp_gt_u32 vcc, 8, v{vC}")
    A(f"  ds_write_b64 v{vAML}, {vr(vM,2)}")
    A("  s_nop 0")
    for i in range(4):
        for j in range(4):
            A(f"  v_cndmask_b32 v{TMP+4*i+j}, v{O+16+4*j+i}, v{O+4*j+i}, vcc")
        A(f"  ds_write_b128 v{vAOW}, {vr(TMP+4*i,4)} offset:{16*i}")
    A("  s_waitcnt lgkmcnt(0)")
    A("  s_barrier")
    stamp()
    A(f"  ds_read_b128 {vr(E,4)}, v{vAMR}")
    A(f"  ds_read_b128 {vr(E+4,4)}, v{vAMR} offset:16")
    for k in range(4):
        A(f"  ds_read_b128 {vr(R+4*k,4)}, v{vAOR} offset:{4096*k}")
    MM = S; LL = S + 1
    A("  s_waitcnt lgkmcnt(4)")
    A(f"  v_max3_f32 v{MM}, v{E}, v{E+2}, v{E+4}")
    A(f"  v_max_f32 v{MM}, v{MM}, v{E+6}")
    for k in range(4):
        A(f"  v_sub_f32 v{E+2*k}, v{E+2*k}, v{MM}")
    for k in range(4):
        A(f"  v_exp_f32 v{E+2*k}, v{E+2*k}")
    A(f"  v_and_b32 v{vY}, 1, v0")
    A(f"  v_cmp_eq_u32 vcc, 0, v{vY}")
    for k in range(4):
        A(f"  s_waitcnt lgkmcnt({3-k})")
        for j in range(4):
            if k == 0:
                A(f"  v_mul_f32 v{R+j}, v{E}, v{R+j}")
            else:
                A(f"  v_fmac_f32 v{R+j}, v{E+2*k}, v{R+4*k+j}")
    A(f"  global_store_dwordx4 v{vAWS}, {vr(R,4)}, s[22:23] {st}")
    A(f"  v_mul_f32 v{LL}, v{E}, v{E+1}")
    for k in range(1, 4):
        A(f"  v_fmac_f32 v{LL}, v{E+2*k}, v{E+2*k+1}")
    A(f"  v_cndmask_b32 v{LL}, v{LL}, v{MM}, vcc")
    A("  s_mov_b32 s64, 3")
    A("  s_mov_b32 s65, 3")
    A("  s_mov_b64 exec, s[64:65]")
    A(f"  global_store_dword v{vAWM}, v{LL}, s[22:23] {st}")
    A("  s_mov_b64 exec, -1")
    if o.tail in ("2k", "none"):
        stamp()
        A("  s_mov_b32 s69, 0")
        A("  s_branch L_fin")
    A("  s_lshl_b32 s64, s24, 6")
    A(f"  v_mov_b32 v{vY}, s64")
    A(f"  v_mov_b32 v{vY+1}, 1")
    A("  s_waitcnt vmcnt(0)")
    A("  s_barrier")
    if o.tail not in ("2k", "none"):
        stamp()
    A("  s_cmp_lg_u32 s3, 0")
    A("  s_cbranch_scc1 L_wait")
    A("  s_mov_b64 exec, 1")
    A(f"  global_atomic_add v{vY+2}, v{vY}, v{vY+1}, s[20:21] sc0 sc1")
    A("  s_waitcnt vmcnt(0)")
    A(f"  v_readfirstlane_b32 s65, v{vY+2}")
    A(f"  ds_write_b32 v{vTK}, v{vY+2}")
    A("  s_cmp_lt_u32 s65, 56")
    A("  s_cbranch_scc1 L_pdone")
    A("  s_cmp_eq_u32 s65, 63")
    A("  s_cbranch_scc1 L_pdone")
    if o.poll == "pipe":
        A(f"  global_load_dword v{E}, v{vY}, s[20:21] sc1")
        A("  s_sleep 2")
        A(f"  global_load_dword v{E+1}, v{vY}, s[20:21] sc1")
        A("  s_sleep 2")
        A(f"  global_load_dword v{E+2}, v{vY}, s[20:21] sc1")
        A("L_poll:")
        for q in range(3):
            A("  s_waitcnt vmcnt(2)")
            A(f"  v_readfirstlane_b32 s66, v{E+q}")
            A("  s_cmp_ge_u32 s66, 64")
            A("  s_cbranch_scc1 L_pdone")
            A(f"  global_load_dword v{E+q}, v{vY}, s[20:21] sc1")
        A("  s_branch L_poll")
    else:
        A("L_poll:")
        A(f"  global_load_dword v{vY+2}, v{vY}, s[20:21] sc1")
        A("  s_waitcnt vmcnt(0)")
        A(f"  v_readfirstlane_b32 s66, v{vY+2}")
        A("  s_cmp_ge_u32 s66, 64")
        A("  s_cbranch_scc1 L_pdone")
        A("  s_sleep 1")
        A("  s_branch L_poll")
    A("L_pdone:")
    A("  s_mov_b64 exec, -1")
    A("  s_waitcnt lgkmcnt(0)")
    A("L_wait:")
    A("  s_barrier")
    A(f"  ds_read_b32 v{vCNT}, v{vTK}")
    A("  v_and_b32 v1, 31, v0")
    A("  v_lshrrev_b32 v2, 5, v0")
    A("  v_and_b32 v3, 63, v0")
    A("  v_lshlrev_b32 v4, 15, v2")
    A("  v_lshl_add_u32 v4, v1, 4, v4")
    A("  s_waitcnt lgkmcnt(0)")
    A(f"  v_readfirstlane_b32 s69, v{vCNT}")
    A("  s_cmp_lt_u32 s69, 56")
    A("  s_cbranch_scc1 L_fin")
    A("  s_sub_u32 s69, s69, 56")
    A("  s_lshl_b32 s66, s24, 18")
    A("  s_lshl_b32 s67, s69, 9")
    A("  s_add_u32 s66, s66, s67")
    A("  s_add_u32 s66, s66, 0x1000")
    A("  v_add_u32 v4, s66, v4")
    A("  v_add_u32 v5, 0x2000, v4")
    A("  v_add_u32 v6, 0x4000, v4")
    A("  v_add_u32 v7, 0x6000, v4")
    A("  s_lshl_b32 s67, s69, 8")
    A("  s_add_u32 s67, s67, s63")
    A(f"  s_add_u32 s68, s67, {WS_M}")
    A("  v_lshl_add_u32 v8, v3, 2, s68")
    A("  v_lshl_add_u32 v9, v2, 5, s68")
    A(f"  v_add_u32 v10, {WS_L-WS_M}, v8")
    A("L_gather:")
    A("  global_load_dword v12, v8, s[22:23] sc1")
    A("  global_load_dword v13, v10, s[22:23] sc1")
    A("  global_load_dwordx4 v[16:19], v9, s[22:23] sc1")
    A("  global_load_dwordx4 v[20:23], v9, s[22:23] offset:16 sc1")
    for k in range(8):
        A(f"  global_load_dwordx4 v[{24+4*k}:{27+4*k}], v{4+k//2}, s[22:23] offset:{-4096 if k % 2 == 0 else 0} sc1")
    stamp()
    A("  s_waitcnt vmcnt(10)")

    def allreduce(op, v, t):
        for ror in (8, 4, 2, 1):
            A("  s_nop 1")
            A(f"  {op}_dpp v{v}, v{v}, v{v} row_ror:{ror} row_mask:0xf bank_mask:0xf")
        xgroup(op, v, t)
    A("  v_mov_b32 v14, v12")
    allreduce("v_max_f32", 14, 15)
    A("  v_sub_f32 v12, v12, v14")
    A("  s_waitcnt vmcnt(8)")
    for k in range(8):
        A(f"  v_sub_f32 v{16+k}, v{16+k}, v14")
    A("  v_exp_f32 v12, v12")
    for k in range(8):
        A(f"  v_exp_f32 v{16+k}, v{16+k}")
    A("  v_mul_f32 v13, v12, v13")
    for k in range(8):
        A(f"  s_waitcnt vmcnt({7-k})")
        for j in range(4):
            if k == 0:
                A(f"  v_mul_f32 v{56+j}, v16, v{24+j}")
            else:
                A(f"  v_fmac_f32 v{56+j}, v{16+k}, v{24+4*k+j}")
    A("  v_lshlrev_b32 v4, 4, v0")
    A(f"  ds_write_b128 v4, v[56:59] offset:{L_K}")
    allreduce("v_add_f32", 13, 15)
    A("  v_rcp_f32 v13, v13")
    A("  s_waitcnt lgkmcnt(0)")
    A("  s_barrier")
    A("  s_cmp_lg_u32 s3, 0")
    A("  s_cbranch_scc1 L_fin")
    A("  v_lshlrev_b32 v4, 3, v0")
    for k in range(8):
        A(f"  ds_read_b64 v[{16+2*k}:{17+2*k}], v4 offset:{L_K+512*k}")
    A("  v_lshl_add_u32 v5, v0, 2, s67")
    A("  s_waitcnt lgkmcnt(0)")
    n = 8
    while n > 1:
        n //= 2
        for k in range(n):
            A(f"  v_pk_add_f32 v[{16+2*k}:{17+2*k}], v[{16+2*k}:{17+2*k}], v[{16+2*(k+n)}:{17+2*(k+n)}]")
    A("  v_mul_f32 v16, v13, v16")
    A("  v_mul_f32 v17, v13, v17")
    A("  v_cvt_pk_bf16_f32 v16, v16, v17")
    A("  global_store_dword v5, v16, s[18:19]")
    A("L_fin:")
    if o.stamp:
        A("  s_waitcnt vmcnt(0)")
        stamp()
        A("  s_getreg_b32 s68, hwreg(HW_REG_XCC_ID)")
        A("  s_waitcnt lgkmcnt(0)")
        A("  v_and_b32 v1, 63, v0")
        A("  v_mov_b32 v20, 0")
        for i in range(nst[0]):
            A(f"  v_writelane_b32 v20, s{70+2*i}, {i}")
        A("  s_sub_u32 s92, s92, s90")
        A("  v_writelane_b32 v20, s92, 12")
        A(f"  v_writelane_b32 v20, s{98 if o.bartime else 52}, 13")
        A("  v_writelane_b32 v20, s68, 14")
        A("  v_writelane_b32 v20, s69, 15")
        A("  s_lshl_b32 s68, s2, 2")
        A("  s_add_u32 s68, s68, s3")
        A("  s_lshl_b32 s68, s68, 6")
        A(f"  s_add_u32 s68, s68, {2<<20}")
        A("  v_lshl_add_u32 v21, v1, 2, s68")
        A("  v_cmp_gt_u32 vcc, 16, v1")
        A("  s_and_saveexec_b64 s[66:67], vcc")
        A("  global_store_dword v21, v20, s[22:23]")
    A("L_end:")
    A("  s_endpgm")
    return K, NV, 100 if o.stamp else 72, LDS_BYTES, 256


def generate(o):
    body = []
    A = body.append
    A('.amdgcn_target "amdgcn-amd-amdhsa--gfx950"')
    A(".text")
    k, nv, ns, lds, threads = gen_main(A, o)
    if o.tail == "2k":
        import gen as G1
        sv = o.stamp
        o.stamp = False
        k2 = G1.gen_combine(A, o)
        o.stamp = sv
    A('.section .rodata,"a"')
    A(".p2align 6")
    descriptor(A, k, nv, ns)
    if o.tail == "2k":
        A(".p2align 6")
        descriptor(A, k2[0], k2[1], k2[2])
        head = HEADER + f"; @launch kernel={k} grid=(256,1,1) block=({threads},1,1) lds={lds}\n" + f"; @launch kernel={k2[0]} grid=(32,1,1) block=(256,1,1) lds={k2[3]}\n"
    else:
        head = HEADER + f"; @launch grid=(256,1,1) block=({threads},1,1) lds={lds}\n"
    return head + "\n".join(body) + "\n"


if __name__ == "__main__":
    ap = argparse.ArgumentParser()
    ap.add_argument("-o", default="cdna_kernels/" + NAME + ".s")
    ap.add_argument("--flags", default="nt")
    ap.add_argument("--sflags", default="")
    ap.add_argument("--stamp", action="store_true")
    ap.add_argument("--ns", type=int, default=32)
    ap.add_argument("--tail", default="atomic")
    ap.add_argument("--poll", default="simple")
    ap.add_argument("--order", default="pos")
    ap.add_argument("--la", type=int, default=0)
    ap.add_argument("--bartime", action="store_true")
    o = ap.parse_args()
    open(o.o, "w").write(generate(o))
```

```python
import sys, argparse
NAME = "standalone__kv_cache_quant_int4_int2_kv_with_per_channel_or_per_token_scales__decode"
HEADER = open("cdna_kernels/" + NAME + ".s.ref").read().split("; Override launch")[0]

LOG2E = 0x3fb8aa3b
SCALE = 0x3db504f3
ROW = 288
KT = 8 * ROW
WS_M = 1 << 20
WS_L = WS_M + 8192
L_ML = 0
L_TK = 256
L_K = 512
L_O = L_K + 4 * KT
L_SC = L_O + 16384
SCA = 4096
LDS_BYTES = L_SC + 4 * SCA


def vr(base, n):
    return f"v[{base}:{base+n-1}]" if n > 1 else f"v{base}"


def descriptor(A, name, nv, ns):
    A(f".amdhsa_kernel {name}")
    A(f"  .amdhsa_next_free_vgpr {nv}")
    A(f"  .amdhsa_next_free_sgpr {ns}")
    A(f"  .amdhsa_accum_offset {(nv+3)//4*4}")
    A("  .amdhsa_group_segment_fixed_size 0")
    A("  .amdhsa_kernarg_size 80")
    A("  .amdhsa_user_sgpr_count 2")
    A("  .amdhsa_user_sgpr_kernarg_segment_ptr 1")
    A("  .amdhsa_system_sgpr_workgroup_id_x 1")
    A("  .amdhsa_float_denorm_mode_32 3")
    A(".end_amdhsa_kernel")


def gen_main(A, o):
    ld = o.flags
    nst = [0]

    def stamp():
        if o.stamp:
            A(f"  s_memrealtime s[{70+2*nst[0]}:{71+2*nst[0]}]")
            nst[0] += 1
    vLANE = 1; vG = 2; vC = 3; vOFF = 4; vLW = 5; vLR = 6; vT0 = 7
    vKA = 8; vVA = 9
    vY = 10
    vM = 14; vL = 15
    E = 16
    S = 24
    PB = 28
    vMR = 30
    vST = 31
    VS = 32; VZ = 34
    KS = 36; KZ = 44
    BQ = 52
    AF = 68
    AV = 84
    O = 100
    vAML = 132; vAOW = 133; vAMR = 134; vAOR = 135; vAWS = 136; vAWM = 137; vTK = 138; vCNT = 139
    X = 140
    RAW = AF
    X2 = 172
    NV = 172 + (32 if o.pro == 3 else 0)
    K = NAME + "_kernel"
    A(f".globl {K}")
    A(".p2align 8")
    A(f".type {K},@function")
    A(f"{K}:")
    A("  s_cmp_ge_u32 s2, 256")
    A("  s_cbranch_scc1 L_end")
    stamp()
    if o.stamp:
        A("  s_memtime s[90:91]")
        A("  s_mov_b32 s82, 0")
    A("  s_load_dwordx16 s[4:19], s[0:1], 0")
    A("  s_load_dwordx4 s[20:23], s[0:1], 64")
    A(f"  v_lshrrev_b32 v{vT0}, 6, v0")
    A(f"  v_and_b32 v{vLANE}, 63, v0")
    A(f"  v_readfirstlane_b32 s3, v{vT0}")
    A(f"  v_lshrrev_b32 v{vG}, 4, v{vLANE}")
    A(f"  v_and_b32 v{vC}, 15, v{vLANE}")
    A(f"  v_lshlrev_b32 v{vOFF}, 12, v{vG}")
    A(f"  v_lshl_add_u32 v{vOFF}, v{vC}, 4, v{vOFF}")
    A(f"  v_lshl_add_u32 v{vOFF}, v{vT0}, 10, v{vOFF}")
    A(f"  v_lshlrev_b32 v{vST}, 4, v{vLANE}")
    A("  s_lshl_b32 s25, s2, 19")
    A("  s_lshl_b32 s26, s2, 11")
    A("  s_lshr_b32 s24, s2, 6")
    A("  s_lshl_b32 s63, s24, 11")
    A(f"  v_and_b32 v{vLW}, 7, v{vC}")
    A(f"  v_lshlrev_b32 v{vLW}, 8, v{vLW}")
    A(f"  v_lshl_add_u32 v{vLW}, v{vG}, 4, v{vLW}")
    A(f"  v_add_u32 v{vLW}, s63, v{vLW}")
    A(f"  v_add_u32 v{vST}, s26, v{vST}")
    A("  s_mov_b32 s30, 0x80000")
    A("  s_mov_b32 s31, 0x00020000")
    A("  s_mov_b32 s34, 0x80000")
    A("  s_mov_b32 s35, 0x00020000")
    A("  s_mov_b32 s59, 0xffff0000")
    A("  s_mov_b32 s56, 0")
    A("  s_cmp_eq_u32 s3, 1")
    A("  s_cselect_b64 s[40:41], -1, 0")
    A("  s_cmp_eq_u32 s3, 2")
    A("  s_cselect_b64 s[42:43], -1, 0")
    A("  s_waitcnt lgkmcnt(0)")
    stamp()

    def big(i, soff, base=X):
        r, half = i & 1, (i >> 1) & 1
        srd = 28 if i < 4 else 32
        A(f"  buffer_load_dwordx4 {vr(base+4*i,4)}, v{vOFF}, s[{srd}:{srd+3}], {soff} offen offset:{r*512+half*256} {ld}")

    def kbase():
        A("  s_add_u32 s28, s6, s25")
        A("  s_addc_u32 s29, s7, 0")

    def vbase():
        A("  s_add_u32 s32, s8, s25")
        A("  s_addc_u32 s33, s9, 0")

    def stage_loads():
        A("  s_cmp_eq_u32 s3, 1")
        A("  s_cselect_b64 s[36:37], s[12:13], s[10:11]")
        A("  s_cmp_eq_u32 s3, 2")
        A("  s_cselect_b64 s[36:37], s[14:15], s[36:37]")
        A("  s_cmp_eq_u32 s3, 3")
        A("  s_cselect_b64 s[36:37], s[16:17], s[36:37]")
        for i in range(2):
            A(f"  global_load_dwordx4 {vr(RAW+4*i,4)}, v{vST}, s[36:37] offset:{1024*i} {ld}")

    def q_loads():
        for s in range(4):
            A(f"  global_load_dwordx4 {vr(BQ+4*s,4)}, v{vLW}, s[4:5] offset:{64*s}")
    if o.pro == 0:
        kbase()
        for i in range(4):
            big(i, "0")
        stage_loads()
        vbase()
        q_loads()
        for i in range(4, 8):
            big(i, "0")
        W1, W2 = 8, 4
    elif o.pro in (1, 3):
        stage_loads()
        kbase()
        for i in range(4):
            big(i, "0")
        vbase()
        q_loads()
        for i in range(4, 8):
            big(i, "0")
        W1, W2 = 12, 12
    elif o.pro == 2:
        kbase()
        big(0, "0")
        stage_loads()
        for i in range(1, 4):
            big(i, "0")
        vbase()
        q_loads()
        for i in range(4, 8):
            big(i, "0")
        W1, W2 = 11, 11
    A(f"  v_lshlrev_b32 v{vKA}, 4, v{vC}")
    A(f"  v_add_u32 v{vKA}, {L_SC}, v{vKA}")
    A(f"  v_lshlrev_b32 v{vVA}, 5, v{vG}")
    A(f"  v_lshl_add_u32 v{vVA}, v{vT0}, 3, v{vVA}")
    A(f"  v_add_u32 v{vVA}, {L_SC+2*SCA}, v{vVA}")
    A(f"  s_mul_i32 s62, s3, {KT}")
    A(f"  s_add_u32 s62, s62, {L_K}")
    A(f"  v_mul_u32_u24 v{vLW}, {2*ROW}, v{vG}")
    A(f"  v_lshl_add_u32 v{vLW}, v{vC}, 3, v{vLW}")
    A(f"  v_add_u32 v{vLW}, s62, v{vLW}")
    A(f"  v_lshrrev_b32 v{vLR}, 2, v{vC}")
    A(f"  v_lshlrev_b32 v{vLR}, 1, v{vLR}")
    A(f"  v_and_b32 v{vY}, 1, v{vC}")
    A(f"  v_add_u32 v{vLR}, v{vLR}, v{vY}")
    A(f"  v_mul_u32_u24 v{vLR}, {ROW}, v{vLR}")
    A(f"  v_lshl_add_u32 v{vLR}, v{vG}, 4, v{vLR}")
    A(f"  v_add_u32 v{vLR}, s62, v{vLR}")
    A("  s_lshl_b32 s58, s3, 12")
    A(f"  s_add_u32 s58, s58, {L_SC}")
    A(f"  v_lshl_add_u32 v{vST}, v{vLANE}, 5, s58")

    def late_setup():
        A(f"  v_and_b32 v{vY}, 7, v{vC}")
        A(f"  v_lshlrev_b32 v{vAML}, 5, v{vY}")
        A(f"  v_lshl_add_u32 v{vAML}, v{vT0}, 3, v{vAML}")
        A(f"  v_lshlrev_b32 v{vAOW}, 9, v{vY}")
        A(f"  v_lshl_add_u32 v{vAOW}, v{vG}, 6, v{vAOW}")
        A(f"  v_and_b32 v{vY}, 8, v{vC}")
        A(f"  v_lshl_add_u32 v{vAOW}, v{vY}, 5, v{vAOW}")
        A(f"  v_lshl_add_u32 v{vAOW}, v{vT0}, 12, v{vAOW}")
        A(f"  v_add_u32 v{vAOW}, {L_O}, v{vAOW}")
        A(f"  v_lshrrev_b32 v{vY}, 5, v0")
        A(f"  v_lshlrev_b32 v{vAMR}, 5, v{vY}")
        A(f"  v_lshlrev_b32 v{vAOR}, 4, v0")
        A("  s_lshl_b32 s64, s2, 12")
        A(f"  v_add_u32 v{vAWS}, s64, v{vAOR}")
        A(f"  v_add_u32 v{vAOR}, {L_O}, v{vAOR}")
        A("  s_and_b32 s64, s2, 63")
        A("  s_lshl_b32 s64, s64, 2")
        A("  s_add_u32 s64, s64, s63")
        A(f"  s_add_u32 s64, s64, {WS_M}")
        A(f"  v_lshlrev_b32 v{vAWM}, 8, v{vY}")
        A(f"  v_and_b32 v{vY}, 1, v0")
        A(f"  v_lshl_add_u32 v{vAWM}, v{vY}, 13, v{vAWM}")
        A(f"  v_add_u32 v{vAWM}, s64, v{vAWM}")
        A(f"  v_mov_b32 v{vTK}, {L_TK}")
        for i in range(32):
            A(f"  v_mov_b32 v{O+i}, 0")
        for i in range(8):
            A(f"  v_mov_b32 v{AV+2*i+1}, 0")
        A(f"  v_mov_b32 v{PB+1}, 0")
        A(f"  v_mov_b32 v{vL}, 0")
        A(f"  v_mov_b32 v{vMR}, 0xff7fffff")
        A(f"  v_mov_b32 v{vM}, 0xff7fffff")
        A(f"  s_mov_b32 s60, {SCALE:#x}")
        A(f"  s_mov_b32 s61, {LOG2E:#x}")
    late_setup()
    A(f"  s_waitcnt vmcnt({W1})")
    for i in range(2):
        for j in range(4):
            A(f"  v_lshlrev_b32 v{KS+8*i+2*j}, 16, v{RAW+4*i+j}")
            A(f"  v_and_b32 v{KS+8*i+2*j+1}, s59, v{RAW+4*i+j}")
        A(f"  ds_write_b128 v{vST}, {vr(KS+8*i,4)} offset:{2048*i}")
        A(f"  ds_write_b128 v{vST}, {vr(KS+8*i+4,4)} offset:{2048*i+16}")
    A(f"  s_waitcnt vmcnt({W2}) lgkmcnt(0)")
    A("  s_barrier")
    stamp()

    def xgroup(op, v, t):
        A(f"  v_mov_b32 v{t}, v{v}")
        A("  s_nop 1")
        A(f"  v_permlane16_swap_b32 v{v}, v{t}")
        A(f"  {op} v{v}, v{v}, v{t}")
        A(f"  v_mov_b32 v{t}, v{v}")
        A("  s_nop 1")
        A(f"  v_permlane32_swap_b32 v{v}, v{t}")
        A(f"  {op} v{v}, v{v}, v{t}")

    if o.align:
        A(f".p2align {o.align}")
    A("L_unit:")
    A(f"  ds_read_b128 {vr(KZ,4)}, v{vKA} offset:{SCA}")
    A(f"  ds_read_b128 {vr(KS,4)}, v{vKA}")
    A(f"  ds_read_b128 {vr(KZ+4,4)}, v{vKA} offset:{SCA+256}")
    A(f"  ds_read_b128 {vr(KS+4,4)}, v{vKA} offset:256")
    A(f"  ds_read_b64 {vr(VS,2)}, v{vVA}")
    A(f"  ds_read_b64 {vr(VZ,2)}, v{vVA} offset:{SCA}")
    A("  s_add_u32 s56, s56, 0x4000")
    A("  s_and_b32 s64, s56, 0xc000")
    A("  s_cselect_b32 s64, 0, 512")
    A(f"  v_add_u32 v{vKA}, s64, v{vKA}")
    A(f"  v_add_u32 v{vVA}, 128, v{vVA}")

    def mfma_qk(ss):
        for sx in ss:
            c = "0" if sx == 0 else vr(S, 4)
            A(f"  v_mfma_f32_16x16x32_bf16 {vr(S,4)}, {vr(AF+4*sx,4)}, {vr(BQ+4*sx,4)}, {c}")
    for i in range(4):
        r, half = i & 1, i >> 1
        x = X + 4 * i
        e = E + 4 * (i & 1)
        y = vY + 2 * (i & 1)
        A("  s_waitcnt vmcnt(7)")
        for j in range(4):
            A(f"  v_cvt_f32_i32 v{e+j}, v{x+j}")
        big(i, "s56")
        if i == 0:
            A("  s_waitcnt lgkmcnt(0)")
        if o.mimic:
            for j in (0, 2):
                A(f"  v_pk_add_f32 {vr(e+j,2)}, {vr(e+j,2)}, {vr(KZ+4*half+j,2)} neg_lo:[0,1] neg_hi:[0,1]")
            for j in range(4):
                A(f"  v_cvt_pk_bf16_f32 v{e+j}, 0, v{e+j}")
            for j in (0, 2):
                A(f"  v_pk_mul_f32 {vr(e+j,2)}, {vr(e+j,2)}, {vr(KS+4*half+j,2)}")
        else:
            for j in (0, 2):
                A(f"  v_pk_add_f32 {vr(e+j,2)}, {vr(e+j,2)}, {vr(KZ+4*half+j,2)} neg_lo:[0,1] neg_hi:[0,1]")
            for j in (0, 2):
                A(f"  v_pk_mul_f32 {vr(e+j,2)}, {vr(e+j,2)}, {vr(KS+4*half+j,2)}")
        A(f"  v_cvt_pk_bf16_f32 v{y}, v{e}, v{e+1}")
        A(f"  v_cvt_pk_bf16_f32 v{y+1}, v{e+2}, v{e+3}")
        A(f"  ds_write_b64 v{vLW}, {vr(y,2)} offset:{r*ROW+half*128}")
        if i & 1:
            for sx in (2 * half, 2 * half + 1):
                A(f"  ds_read_b128 {vr(AF+4*sx,4)}, v{vLR} offset:{sx*64}")
    for i in range(4):
        r, half = i & 1, i >> 1
        x = X + 16 + 4 * i
        e = E + 4 * (i & 1)
        A("  s_waitcnt vmcnt(7)")
        for j in range(4):
            A(f"  v_cvt_f32_i32 v{e+j}, v{x+j}")
        big(4 + i, "s56")
        sel = "op_sel:[0,1] op_sel_hi:[1,1]" if r else "op_sel_hi:[1,0]"
        for j in (0, 2):
            A(f"  v_pk_add_f32 {vr(e+j,2)}, {vr(e+j,2)}, {vr(VZ,2)} {sel} neg_lo:[0,1] neg_hi:[0,1]")
        if r:
            for j in range(4):
                A(f"  v_cvt_pk_bf16_f32 v{AV+8*half+2*j}, v{E+j}, v{E+4+j}")
        if i == 0:
            A("  s_waitcnt lgkmcnt(4)")
            mfma_qk((0, 1))
        if i == 1:
            A("  s_waitcnt lgkmcnt(0)")
            mfma_qk((2, 3))
    for j in range(2):
        A(f"  v_cvt_pk_bf16_f32 v{S+j}, 0, v{S+j}")
    for j in range(2):
        A(f"  v_mul_f32 v{S+j}, s60, v{S+j}")
    for j in range(2):
        A(f"  v_cvt_pk_bf16_f32 v{S+j}, 0, v{S+j}")
    A(f"  v_max_f32 v{S+2}, v{S}, v{S+1}")
    A(f"  v_cmp_gt_f32 vcc, v{S+2}, v{vMR}")
    A("  s_cbranch_vccz L_nomax")
    xgroup("v_max_f32", S + 2, S + 3)
    A(f"  v_max_f32 v{vMR}, v{vMR}, v{S+2}")
    A(f"  v_mul_f32 v{S+2}, s61, v{vMR}")
    A(f"  v_sub_f32 v{S+3}, v{vM}, v{S+2}")
    A(f"  v_exp_f32 v{S+3}, v{S+3}")
    A(f"  v_mov_b32 v{vM}, v{S+2}")
    A(f"  v_mul_f32 v{vL}, v{vL}, v{S+3}")
    for i in range(16):
        A(f"  v_pk_mul_f32 {vr(O+2*i,2)}, {vr(O+2*i,2)}, {vr(S+2,2)} op_sel:[0,1] op_sel_hi:[1,1]")
    A("L_nomax:")
    for j in range(2):
        A(f"  v_fma_f32 v{S+j}, v{S+j}, s61, -v{vM}")
    for j in range(2):
        A(f"  v_exp_f32 v{S+j}, v{S+j}")
    A("  s_cmp_lt_u32 s56, 0x80000")
    A(f"  v_add_f32 v{vL}, v{vL}, v{S}")
    A(f"  v_add_f32 v{vL}, v{vL}, v{S+1}")
    A(f"  v_pk_mul_f32 {vr(S,2)}, {vr(S,2)}, {vr(VS,2)}")
    A(f"  v_cvt_pk_bf16_f32 v{PB}, v{S}, v{S+1}")
    A("  s_nop 1")
    for h in range(2):
        for j in range(4):
            a = O + 16 * h + 4 * j
            A(f"  v_mfma_f32_16x16x16_bf16 {vr(a,4)}, {vr(AV+8*h+2*j,2)}, {vr(PB,2)}, {vr(a,4)}")
    A("  s_cbranch_scc1 L_unit")
    stamp()
    if o.stamp:
        A("  s_memtime s[92:93]")
    TMP = KS
    R = BQ
    xgroup("v_add_f32", vL, vY)
    A(f"  v_cmp_gt_u32 vcc, 8, v{vC}")
    A(f"  ds_write_b64 v{vAML}, {vr(vM,2)}")
    A("  s_nop 0")
    for i in range(4):
        for j in range(4):
            A(f"  v_cndmask_b32 v{TMP+4*i+j}, v{O+16+4*j+i}, v{O+4*j+i}, vcc")
        A(f"  ds_write_b128 v{vAOW}, {vr(TMP+4*i,4)} offset:{16*i}")
    A("  s_waitcnt lgkmcnt(0)")
    A("  s_barrier")
    stamp()
    A(f"  ds_read_b128 {vr(E,4)}, v{vAMR}")
    A(f"  ds_read_b128 {vr(E+4,4)}, v{vAMR} offset:16")
    for k in range(4):
        A(f"  ds_read_b128 {vr(R+4*k,4)}, v{vAOR} offset:{4096*k}")
    MM = S; LL = S + 1
    A(f"  v_and_b32 v{vY}, 1, v0")
    A(f"  v_cmp_eq_u32 vcc, 0, v{vY}")
    A("  s_waitcnt lgkmcnt(4)")
    A(f"  v_max3_f32 v{MM}, v{E}, v{E+2}, v{E+4}")
    A(f"  v_max_f32 v{MM}, v{MM}, v{E+6}")
    for k in range(4):
        A(f"  v_sub_f32 v{E+2*k}, v{E+2*k}, v{MM}")
    for k in range(4):
        A(f"  v_exp_f32 v{E+2*k}, v{E+2*k}")
    for k in range(4):
        A(f"  s_waitcnt lgkmcnt({3-k})")
        for j in range(4):
            if k == 0:
                A(f"  v_mul_f32 v{R+j}, v{E}, v{R+j}")
            else:
                A(f"  v_fmac_f32 v{R+j}, v{E+2*k}, v{R+4*k+j}")
    A(f"  global_store_dwordx4 v{vAWS}, {vr(R,4)}, s[22:23] sc1")
    A(f"  v_mul_f32 v{LL}, v{E}, v{E+1}")
    for k in range(1, 4):
        A(f"  v_fmac_f32 v{LL}, v{E+2*k}, v{E+2*k+1}")
    A(f"  v_cndmask_b32 v{LL}, v{LL}, v{MM}, vcc")
    A("  s_mov_b32 s64, 3")
    A("  s_mov_b32 s65, 3")
    A("  s_mov_b64 exec, s[64:65]")
    A(f"  global_store_dword v{vAWM}, v{LL}, s[22:23] sc1")
    A("  s_mov_b64 exec, -1")
    if o.tail == "none":
        stamp()
        A("  s_mov_b32 s69, 0")
        A("  s_branch L_fin")
    A("  s_lshl_b32 s64, s24, 6")
    A(f"  v_mov_b32 v{vY}, s64")
    A(f"  v_mov_b32 v{vY+1}, 1")
    A("  v_and_b32 v1, 31, v0")
    A("  v_lshrrev_b32 v2, 5, v0")
    A("  v_and_b32 v3, 63, v0")
    A("  v_lshlrev_b32 v4, 15, v2")
    A("  v_lshl_add_u32 v4, v1, 4, v4")
    A("  s_lshl_b32 s66, s24, 18")
    A("  s_add_u32 s66, s66, 0x1000")
    A("  v_add_u32 v4, s66, v4")
    A("  v_add_u32 v5, 0x2000, v4")
    A("  v_add_u32 v6, 0x4000, v4")
    A("  v_add_u32 v7, 0x6000, v4")
    A(f"  s_add_u32 s68, s63, {WS_M}")
    A("  v_lshl_add_u32 v8, v3, 2, s68")
    A("  v_lshl_add_u32 v9, v2, 5, s68")
    A(f"  v_add_u32 v14, {WS_L-WS_M}, v8")
    A("  s_waitcnt vmcnt(0)")
    A("  s_barrier")
    if o.tail != "none":
        stamp()
    A("  s_cmp_lg_u32 s3, 0")
    A("  s_cbranch_scc1 L_wait")
    A("  s_mov_b64 exec, 1")
    A(f"  global_atomic_add v{vY+2}, v{vY}, v{vY+1}, s[20:21] sc0 sc1")
    A("  s_waitcnt vmcnt(0)")
    A(f"  v_readfirstlane_b32 s65, v{vY+2}")
    A(f"  ds_write_b32 v{vTK}, v{vY+2}")
    A("  s_cmp_lt_u32 s65, 56")
    A("  s_cbranch_scc1 L_pdone")
    A("  s_cmp_eq_u32 s65, 63")
    A("  s_cbranch_scc1 L_pdone")
    A("L_poll:")
    A(f"  global_load_dword v{vY+2}, v{vY}, s[20:21] sc1")
    A("  s_waitcnt vmcnt(0)")
    A(f"  v_readfirstlane_b32 s66, v{vY+2}")
    A("  s_cmp_ge_u32 s66, 64")
    A("  s_cbranch_scc1 L_pdone")
    if o.psleep:
        A(f"  s_sleep {o.psleep}")
    A("  s_branch L_poll")
    A("L_pdone:")
    A("  s_mov_b64 exec, -1")
    A("  s_waitcnt lgkmcnt(0)")
    A("L_wait:")
    A("  s_barrier")
    A(f"  ds_read_b32 v{vCNT}, v{vTK}")
    A("  s_waitcnt lgkmcnt(0)")
    A(f"  v_readfirstlane_b32 s69, v{vCNT}")
    A("  s_cmp_lt_u32 s69, 56")
    A("  s_cbranch_scc1 L_fin")
    A("  s_sub_u32 s69, s69, 56")
    A("  s_lshl_b32 s67, s69, 8")
    A("  s_add_u32 s44, s22, s67")
    A("  s_addc_u32 s45, s23, 0")
    A("  s_add_u32 s46, s44, s67")
    A("  s_addc_u32 s47, s45, 0")
    A("  global_load_dword v12, v8, s[44:45] sc1")
    A("  global_load_dword v13, v14, s[44:45] sc1")
    A("  global_load_dwordx4 v[16:19], v9, s[44:45] sc1")
    A("  global_load_dwordx4 v[20:23], v9, s[44:45] offset:16 sc1")
    for k in range(8):
        A(f"  global_load_dwordx4 v[{24+4*k}:{27+4*k}], v{4+k//2}, s[46:47] offset:{-4096 if k % 2 == 0 else 0} sc1")
    stamp()
    A("  s_add_u32 s67, s67, s63")
    A("  v_lshlrev_b32 v4, 4, v0")
    A("  v_lshlrev_b32 v6, 3, v0")
    A("  v_lshl_add_u32 v5, v0, 2, s67")
    A("  s_waitcnt vmcnt(10)")

    def allreduce(op, v, t):
        for ror in (8, 4, 2, 1):
            A("  s_nop 1")
            A(f"  {op}_dpp v{v}, v{v}, v{v} row_ror:{ror} row_mask:0xf bank_mask:0xf")
        xgroup(op, v, t)
    A("  v_mov_b32 v14, v12")
    allreduce("v_max_f32", 14, 15)
    A("  v_sub_f32 v12, v12, v14")
    A("  s_waitcnt vmcnt(8)")
    for k in range(8):
        A(f"  v_sub_f32 v{16+k}, v{16+k}, v14")
    A("  v_exp_f32 v12, v12")
    for k in range(8):
        A(f"  v_exp_f32 v{16+k}, v{16+k}")
    A("  v_mul_f32 v13, v12, v13")
    for k in range(8):
        A(f"  s_waitcnt vmcnt({7-k})")
        for j in range(4):
            if k == 0:
                A(f"  v_mul_f32 v{56+j}, v16, v{24+j}")
            else:
                A(f"  v_fmac_f32 v{56+j}, v{16+k}, v{24+4*k+j}")
    A(f"  ds_write_b128 v4, v[56:59] offset:{L_K}")
    allreduce("v_add_f32", 13, 15)
    A("  v_rcp_f32 v13, v13")
    A("  s_waitcnt lgkmcnt(0)")
    A("  s_barrier")
    A("  s_cmp_lg_u32 s3, 0")
    A("  s_cbranch_scc1 L_fin")
    for k in range(8):
        A(f"  ds_read_b64 v[{16+2*k}:{17+2*k}], v6 offset:{L_K+512*k}")
    A("  s_waitcnt lgkmcnt(0)")
    n = 8
    while n > 1:
        n //= 2
        for k in range(n):
            A(f"  v_pk_add_f32 v[{16+2*k}:{17+2*k}], v[{16+2*k}:{17+2*k}], v[{16+2*(k+n)}:{17+2*(k+n)}]")
    A("  v_mul_f32 v16, v13, v16")
    A("  v_mul_f32 v17, v13, v17")
    A("  v_cvt_pk_bf16_f32 v16, v16, v17")
    A("  global_store_dword v5, v16, s[18:19]")
    A("L_fin:")
    if o.stamp:
        A("  s_waitcnt vmcnt(0)")
        stamp()
        A("  s_getreg_b32 s68, hwreg(HW_REG_XCC_ID)")
        A("  s_waitcnt lgkmcnt(0)")
        A("  v_and_b32 v1, 63, v0")
        A("  v_mov_b32 v20, 0")
        for i in range(nst[0]):
            A(f"  v_writelane_b32 v20, s{70+2*i}, {i}")
        A("  s_sub_u32 s92, s92, s90")
        A("  v_writelane_b32 v20, s92, 12")
        A("  v_writelane_b32 v20, s68, 14")
        A("  v_writelane_b32 v20, s69, 15")
        A("  s_lshl_b32 s68, s2, 2")
        A("  s_add_u32 s68, s68, s3")
        A("  s_lshl_b32 s68, s68, 6")
        A(f"  s_add_u32 s68, s68, {2<<20}")
        A("  v_lshl_add_u32 v21, v1, 2, s68")
        A("  v_cmp_gt_u32 vcc, 16, v1")
        A("  s_and_saveexec_b64 s[66:67], vcc")
        A("  global_store_dword v21, v20, s[22:23]")
    A("L_end:")
    A("  s_endpgm")
    return K, NV, 100 if o.stamp else 72, LDS_BYTES, 256


def generate(o):
    body = []
    A = body.append
    A('.amdgcn_target "amdgcn-amd-amdhsa--gfx950"')
    A(".text")
    k, nv, ns, lds, threads = gen_main(A, o)
    A('.section .rodata,"a"')
    A(".p2align 6")
    descriptor(A, k, nv, ns)
    head = HEADER + f"; @launch grid=(256,1,1) block=({threads},1,1) lds={lds}\n"
    return head + "\n".join(body) + "\n"


if __name__ == "__main__":
    ap = argparse.ArgumentParser()
    ap.add_argument("-o", default="cdna_kernels/" + NAME + ".s")
    ap.add_argument("--flags", default="nt")
    ap.add_argument("--stamp", action="store_true")
    ap.add_argument("--tail", default="atomic")
    ap.add_argument("--pro", type=int, default=1)
    ap.add_argument("--psleep", type=int, default=1)
    ap.add_argument("--align", type=int, default=0)
    ap.add_argument("--mimic", type=int, default=1)
    o = ap.parse_args()
    open(o.o, "w").write(generate(o))
```

```python
import sys, argparse
NAME = "standalone__kv_cache_quant_int4_int2_kv_with_per_channel_or_per_token_scales__decode"
HEADER = open("cdna_kernels/" + NAME + ".s.ref").read().split("; Override launch")[0]

LOG2E = 0x3fb8aa3b
SCALE = 0x3db504f3
ROW = 288
KT = 8 * ROW
WS_M = 1 << 20
WS_L = WS_M + 8192
L_ML = 0
L_TK = 256
L_K = 512
L_O = L_K + 4 * KT
L_SC = L_O + 16384
SCA = 4096
LDS_BYTES = L_SC + 4 * SCA


def vr(base, n):
    return f"v[{base}:{base+n-1}]" if n > 1 else f"v{base}"


def descriptor(A, name, nv, ns):
    A(f".amdhsa_kernel {name}")
    A(f"  .amdhsa_next_free_vgpr {nv}")
    A(f"  .amdhsa_next_free_sgpr {ns}")
    A(f"  .amdhsa_accum_offset {(nv+3)//4*4}")
    A("  .amdhsa_group_segment_fixed_size 0")
    A("  .amdhsa_kernarg_size 80")
    A("  .amdhsa_user_sgpr_count 2")
    A("  .amdhsa_user_sgpr_kernarg_segment_ptr 1")
    A("  .amdhsa_system_sgpr_workgroup_id_x 1")
    A("  .amdhsa_float_denorm_mode_32 3")
    A(".end_amdhsa_kernel")


def gen_main(A, o):
    ld = o.flags
    nst = [0]

    def stamp():
        if o.stamp:
            A(f"  s_memrealtime s[{70+2*nst[0]}:{71+2*nst[0]}]")
            nst[0] += 1
    vLANE = 1; vG = 2; vC = 3; vOFF = 4; vLW = 5; vLR = 6; vT0 = 7
    vKA = 8; vVA = 9
    vY = 10
    vM = 14; vL = 15
    E = 16
    S = 24
    PB = 28
    vMR = 30
    vST = 31
    VS = 32; VZ = 34
    KS = 36; KZ = 44
    BQ = 52
    AF = 68
    AV = 84
    O = 100
    vAML = 132; vAOW = 133; vAMR = 134; vAOR = 135; vAWS = 136; vAWM = 137; vTK = 138; vCNT = 139
    X = 140
    RAW = AF
    X2 = 172
    NV = 172 + (32 if o.pro == 3 else 0)
    K = NAME + "_kernel"
    A(f".globl {K}")
    A(".p2align 8")
    A(f".type {K},@function")
    A(f"{K}:")
    A("  s_cmp_ge_u32 s2, 256")
    A("  s_cbranch_scc1 L_end")
    stamp()
    if o.stamp:
        A("  s_memtime s[90:91]")
        A("  s_mov_b32 s82, 0")
    A("  s_load_dwordx16 s[4:19], s[0:1], 0")
    A("  s_load_dwordx4 s[20:23], s[0:1], 64")
    A(f"  v_lshrrev_b32 v{vT0}, 6, v0")
    A(f"  v_and_b32 v{vLANE}, 63, v0")
    A(f"  v_readfirstlane_b32 s3, v{vT0}")
    A(f"  v_lshrrev_b32 v{vG}, 4, v{vLANE}")
    A(f"  v_and_b32 v{vC}, 15, v{vLANE}")
    A(f"  v_lshlrev_b32 v{vOFF}, 12, v{vG}")
    A(f"  v_lshl_add_u32 v{vOFF}, v{vC}, 4, v{vOFF}")
    A(f"  v_lshl_add_u32 v{vOFF}, v{vT0}, 10, v{vOFF}")
    A(f"  v_lshlrev_b32 v{vST}, 4, v{vLANE}")
    A("  s_lshl_b32 s25, s2, 19")
    A("  s_lshl_b32 s26, s2, 11")
    A("  s_lshr_b32 s24, s2, 6")
    A("  s_lshl_b32 s63, s24, 11")
    A(f"  v_and_b32 v{vLW}, 7, v{vC}")
    A(f"  v_lshlrev_b32 v{vLW}, 8, v{vLW}")
    A(f"  v_lshl_add_u32 v{vLW}, v{vG}, 4, v{vLW}")
    A(f"  v_add_u32 v{vLW}, s63, v{vLW}")
    A(f"  v_add_u32 v{vST}, s26, v{vST}")
    A("  s_mov_b32 s30, 0x80000")
    A("  s_mov_b32 s31, 0x00020000")
    A("  s_mov_b32 s34, 0x80000")
    A("  s_mov_b32 s35, 0x00020000")
    A("  s_mov_b32 s59, 0xffff0000")
    A("  s_mov_b32 s56, 0")
    A("  s_cmp_eq_u32 s3, 1")
    A("  s_cselect_b64 s[40:41], -1, 0")
    A("  s_cmp_eq_u32 s3, 2")
    A("  s_cselect_b64 s[42:43], -1, 0")
    A("  s_waitcnt lgkmcnt(0)")
    stamp()

    def big(i, soff, base=X):
        r, half = i & 1, (i >> 1) & 1
        srd = 28 if i < 4 else 32
        A(f"  buffer_load_dwordx4 {vr(base+4*i,4)}, v{vOFF}, s[{srd}:{srd+3}], {soff} offen offset:{r*512+half*256} {ld}")

    LAG = o.lag

    def reissue(pos):
        if pos >= LAG:
            big(pos - LAG, "s56")
        else:
            big(8 - LAG + pos, "s57")

    def kbase():
        A("  s_add_u32 s28, s6, s25")
        A("  s_addc_u32 s29, s7, 0")

    def vbase():
        A("  s_add_u32 s32, s8, s25")
        A("  s_addc_u32 s33, s9, 0")

    def stage_loads():
        A("  s_cmp_eq_u32 s3, 1")
        A("  s_cselect_b64 s[36:37], s[12:13], s[10:11]")
        A("  s_cmp_eq_u32 s3, 2")
        A("  s_cselect_b64 s[36:37], s[14:15], s[36:37]")
        A("  s_cmp_eq_u32 s3, 3")
        A("  s_cselect_b64 s[36:37], s[16:17], s[36:37]")
        for i in range(2):
            A(f"  global_load_dwordx4 {vr(RAW+4*i,4)}, v{vST}, s[36:37] offset:{1024*i} {ld}")

    def q_loads():
        for s in range(4):
            A(f"  global_load_dwordx4 {vr(BQ+4*s,4)}, v{vLW}, s[4:5] offset:{64*s}")
    if o.pro == 0:
        kbase()
        for i in range(4):
            big(i, "0")
        stage_loads()
        vbase()
        q_loads()
        for i in range(4, 8 - LAG):
            big(i, "0")
        W1, W2 = 8, 4
    elif o.pro in (1, 3):
        stage_loads()
        kbase()
        for i in range(4):
            big(i, "0")
        vbase()
        q_loads()
        for i in range(4, 8 - LAG):
            big(i, "0")
        W1, W2 = 12, 12
    elif o.pro == 2:
        kbase()
        big(0, "0")
        stage_loads()
        for i in range(1, 4):
            big(i, "0")
        vbase()
        q_loads()
        for i in range(4, 8 - LAG):
            big(i, "0")
        W1, W2 = 11, 11
    A(f"  v_lshlrev_b32 v{vKA}, 4, v{vC}")
    A(f"  v_add_u32 v{vKA}, {L_SC}, v{vKA}")
    A(f"  v_lshlrev_b32 v{vVA}, 5, v{vG}")
    A(f"  v_lshl_add_u32 v{vVA}, v{vT0}, 3, v{vVA}")
    A(f"  v_add_u32 v{vVA}, {L_SC+2*SCA}, v{vVA}")
    A(f"  s_mul_i32 s62, s3, {KT}")
    A(f"  s_add_u32 s62, s62, {L_K}")
    A(f"  v_mul_u32_u24 v{vLW}, {2*ROW}, v{vG}")
    A(f"  v_lshl_add_u32 v{vLW}, v{vC}, 3, v{vLW}")
    A(f"  v_add_u32 v{vLW}, s62, v{vLW}")
    A(f"  v_lshrrev_b32 v{vLR}, 2, v{vC}")
    A(f"  v_lshlrev_b32 v{vLR}, 1, v{vLR}")
    A(f"  v_and_b32 v{vY}, 1, v{vC}")
    A(f"  v_add_u32 v{vLR}, v{vLR}, v{vY}")
    A(f"  v_mul_u32_u24 v{vLR}, {ROW}, v{vLR}")
    A(f"  v_lshl_add_u32 v{vLR}, v{vG}, 4, v{vLR}")
    A(f"  v_add_u32 v{vLR}, s62, v{vLR}")
    A("  s_lshl_b32 s58, s3, 12")
    A(f"  s_add_u32 s58, s58, {L_SC}")
    A(f"  v_lshl_add_u32 v{vST}, v{vLANE}, 5, s58")

    def late_setup():
        A(f"  v_and_b32 v{vY}, 7, v{vC}")
        A(f"  v_lshlrev_b32 v{vAML}, 5, v{vY}")
        A(f"  v_lshl_add_u32 v{vAML}, v{vT0}, 3, v{vAML}")
        A(f"  v_lshlrev_b32 v{vAOW}, 9, v{vY}")
        A(f"  v_lshl_add_u32 v{vAOW}, v{vG}, 6, v{vAOW}")
        A(f"  v_and_b32 v{vY}, 8, v{vC}")
        A(f"  v_lshl_add_u32 v{vAOW}, v{vY}, 5, v{vAOW}")
        A(f"  v_lshl_add_u32 v{vAOW}, v{vT0}, 12, v{vAOW}")
        A(f"  v_add_u32 v{vAOW}, {L_O}, v{vAOW}")
        A(f"  v_lshrrev_b32 v{vY}, 5, v0")
        A(f"  v_lshlrev_b32 v{vAMR}, 5, v{vY}")
        A(f"  v_lshlrev_b32 v{vAOR}, 4, v0")
        A("  s_lshl_b32 s64, s2, 12")
        A(f"  v_add_u32 v{vAWS}, s64, v{vAOR}")
        A(f"  v_add_u32 v{vAOR}, {L_O}, v{vAOR}")
        A("  s_and_b32 s64, s2, 63")
        A("  s_lshl_b32 s64, s64, 2")
        A("  s_add_u32 s64, s64, s63")
        A(f"  s_add_u32 s64, s64, {WS_M}")
        A(f"  v_lshlrev_b32 v{vAWM}, 8, v{vY}")
        A(f"  v_and_b32 v{vY}, 1, v0")
        A(f"  v_lshl_add_u32 v{vAWM}, v{vY}, 13, v{vAWM}")
        A(f"  v_add_u32 v{vAWM}, s64, v{vAWM}")
        A(f"  v_mov_b32 v{vTK}, {L_TK}")
        for i in range(32):
            A(f"  v_mov_b32 v{O+i}, 0")
        for i in range(8):
            A(f"  v_mov_b32 v{AV+2*i+1}, 0")
        A(f"  v_mov_b32 v{PB+1}, 0")
        A(f"  v_mov_b32 v{vL}, 0")
        A(f"  v_mov_b32 v{vMR}, 0xff7fffff")
        A(f"  v_mov_b32 v{vM}, 0xff7fffff")
        A(f"  s_mov_b32 s60, {SCALE:#x}")
        A(f"  s_mov_b32 s61, {LOG2E:#x}")
    late_setup()
    A(f"  s_waitcnt vmcnt({W1-LAG})")
    for i in range(2):
        for j in range(4):
            A(f"  v_lshlrev_b32 v{KS+8*i+2*j}, 16, v{RAW+4*i+j}")
            A(f"  v_and_b32 v{KS+8*i+2*j+1}, s59, v{RAW+4*i+j}")
        A(f"  ds_write_b128 v{vST}, {vr(KS+8*i,4)} offset:{2048*i}")
        A(f"  ds_write_b128 v{vST}, {vr(KS+8*i+4,4)} offset:{2048*i+16}")
    A(f"  s_waitcnt vmcnt({W2-LAG}) lgkmcnt(0)")
    A("  s_barrier")
    stamp()

    def xgroup(op, v, t):
        A(f"  v_mov_b32 v{t}, v{v}")
        A("  s_nop 1")
        A(f"  v_permlane16_swap_b32 v{v}, v{t}")
        A(f"  {op} v{v}, v{v}, v{t}")
        A(f"  v_mov_b32 v{t}, v{v}")
        A("  s_nop 1")
        A(f"  v_permlane32_swap_b32 v{v}, v{t}")
        A(f"  {op} v{v}, v{v}, v{t}")

    if o.align:
        A(f".p2align {o.align}")
    A("L_unit:")
    A(f"  ds_read_b128 {vr(KZ,4)}, v{vKA} offset:{SCA}")
    A(f"  ds_read_b128 {vr(KS,4)}, v{vKA}")
    A(f"  ds_read_b128 {vr(KZ+4,4)}, v{vKA} offset:{SCA+256}")
    A(f"  ds_read_b128 {vr(KS+4,4)}, v{vKA} offset:256")
    A(f"  ds_read_b64 {vr(VS,2)}, v{vVA}")
    A(f"  ds_read_b64 {vr(VZ,2)}, v{vVA} offset:{SCA}")
    if LAG:
        A("  s_mov_b32 s57, s56")
    A("  s_add_u32 s56, s56, 0x4000")
    A("  s_and_b32 s64, s56, 0xc000")
    A("  s_cselect_b32 s64, 0, 512")
    A(f"  v_add_u32 v{vKA}, s64, v{vKA}")
    A(f"  v_add_u32 v{vVA}, 128, v{vVA}")

    def mfma_qk(ss):
        for sx in ss:
            c = "0" if sx == 0 else vr(S, 4)
            A(f"  v_mfma_f32_16x16x32_bf16 {vr(S,4)}, {vr(AF+4*sx,4)}, {vr(BQ+4*sx,4)}, {c}")
    for i in range(4):
        r, half = i & 1, i >> 1
        x = X + 4 * i
        e = E + 4 * (i & 1)
        y = vY + 2 * (i & 1)
        A(f"  s_waitcnt vmcnt({7-LAG})")
        for j in range(4):
            A(f"  v_cvt_f32_i32 v{e+j}, v{x+j}")
        reissue(i)
        if i == 0:
            A("  s_waitcnt lgkmcnt(0)")
        if o.mimic:
            for j in (0, 2):
                A(f"  v_pk_add_f32 {vr(e+j,2)}, {vr(e+j,2)}, {vr(KZ+4*half+j,2)} neg_lo:[0,1] neg_hi:[0,1]")
            for j in range(4):
                A(f"  v_cvt_pk_bf16_f32 v{e+j}, 0, v{e+j}")
            for j in (0, 2):
                A(f"  v_pk_mul_f32 {vr(e+j,2)}, {vr(e+j,2)}, {vr(KS+4*half+j,2)}")
        else:
            for j in (0, 2):
                A(f"  v_pk_add_f32 {vr(e+j,2)}, {vr(e+j,2)}, {vr(KZ+4*half+j,2)} neg_lo:[0,1] neg_hi:[0,1]")
            for j in (0, 2):
                A(f"  v_pk_mul_f32 {vr(e+j,2)}, {vr(e+j,2)}, {vr(KS+4*half+j,2)}")
        A(f"  v_cvt_pk_bf16_f32 v{y}, v{e}, v{e+1}")
        A(f"  v_cvt_pk_bf16_f32 v{y+1}, v{e+2}, v{e+3}")
        A(f"  ds_write_b64 v{vLW}, {vr(y,2)} offset:{r*ROW+half*128}")
        if i & 1:
            for sx in (2 * half, 2 * half + 1):
                A(f"  ds_read_b128 {vr(AF+4*sx,4)}, v{vLR} offset:{sx*64}")
    for i in range(4):
        r, half = i & 1, i >> 1
        x = X + 16 + 4 * i
        e = E + 4 * (i & 1)
        A(f"  s_waitcnt vmcnt({7-LAG})")
        for j in range(4):
            A(f"  v_cvt_f32_i32 v{e+j}, v{x+j}")
        reissue(4 + i)
        sel = "op_sel:[0,1] op_sel_hi:[1,1]" if r else "op_sel_hi:[1,0]"
        for j in (0, 2):
            A(f"  v_pk_add_f32 {vr(e+j,2)}, {vr(e+j,2)}, {vr(VZ,2)} {sel} neg_lo:[0,1] neg_hi:[0,1]")
        if r:
            for j in range(4):
                A(f"  v_cvt_pk_bf16_f32 v{AV+8*half+2*j}, v{E+j}, v{E+4+j}")
        if i == 0:
            A("  s_waitcnt lgkmcnt(4)")
            mfma_qk((0, 1))
        if i == 1:
            A("  s_waitcnt lgkmcnt(0)")
            mfma_qk((2, 3))
    for j in range(2):
        A(f"  v_cvt_pk_bf16_f32 v{S+j}, 0, v{S+j}")
    for j in range(2):
        A(f"  v_mul_f32 v{S+j}, s60, v{S+j}")
    for j in range(2):
        A(f"  v_cvt_pk_bf16_f32 v{S+j}, 0, v{S+j}")
    A(f"  v_max_f32 v{S+2}, v{S}, v{S+1}")
    A(f"  v_cmp_gt_f32 vcc, v{S+2}, v{vMR}")
    A("  s_cbranch_vccz L_nomax")
    xgroup("v_max_f32", S + 2, S + 3)
    A(f"  v_max_f32 v{vMR}, v{vMR}, v{S+2}")
    A(f"  v_mul_f32 v{S+2}, s61, v{vMR}")
    A(f"  v_sub_f32 v{S+3}, v{vM}, v{S+2}")
    A(f"  v_exp_f32 v{S+3}, v{S+3}")
    A(f"  v_mov_b32 v{vM}, v{S+2}")
    A(f"  v_mul_f32 v{vL}, v{vL}, v{S+3}")
    for i in range(16):
        A(f"  v_pk_mul_f32 {vr(O+2*i,2)}, {vr(O+2*i,2)}, {vr(S+2,2)} op_sel:[0,1] op_sel_hi:[1,1]")
    A("L_nomax:")
    for j in range(2):
        A(f"  v_fma_f32 v{S+j}, v{S+j}, s61, -v{vM}")
    for j in range(2):
        A(f"  v_exp_f32 v{S+j}, v{S+j}")
    A("  s_cmp_lt_u32 s56, 0x80000")
    A(f"  v_add_f32 v{vL}, v{vL}, v{S}")
    A(f"  v_add_f32 v{vL}, v{vL}, v{S+1}")
    A(f"  v_pk_mul_f32 {vr(S,2)}, {vr(S,2)}, {vr(VS,2)}")
    A(f"  v_cvt_pk_bf16_f32 v{PB}, v{S}, v{S+1}")
    A("  s_nop 1")
    for h in range(2):
        for j in range(4):
            a = O + 16 * h + 4 * j
            A(f"  v_mfma_f32_16x16x16_bf16 {vr(a,4)}, {vr(AV+8*h+2*j,2)}, {vr(PB,2)}, {vr(a,4)}")
    A("  s_cbranch_scc1 L_unit")
    stamp()
    if o.stamp:
        A("  s_memtime s[92:93]")
    TMP = KS
    R = BQ
    xgroup("v_add_f32", vL, vY)
    A(f"  v_cmp_gt_u32 vcc, 8, v{vC}")
    A(f"  ds_write_b64 v{vAML}, {vr(vM,2)}")
    A("  s_nop 0")
    for i in range(4):
        for j in range(4):
            A(f"  v_cndmask_b32 v{TMP+4*i+j}, v{O+16+4*j+i}, v{O+4*j+i}, vcc")
        A(f"  ds_write_b128 v{vAOW}, {vr(TMP+4*i,4)} offset:{16*i}")
    A("  s_waitcnt lgkmcnt(0)")
    A("  s_barrier")
    stamp()
    A(f"  ds_read_b128 {vr(E,4)}, v{vAMR}")
    A(f"  ds_read_b128 {vr(E+4,4)}, v{vAMR} offset:16")
    for k in range(4):
        A(f"  ds_read_b128 {vr(R+4*k,4)}, v{vAOR} offset:{4096*k}")
    MM = S; LL = S + 1
    A(f"  v_and_b32 v{vY}, 1, v0")
    A(f"  v_cmp_eq_u32 vcc, 0, v{vY}")
    A("  s_waitcnt lgkmcnt(4)")
    A(f"  v_max3_f32 v{MM}, v{E}, v{E+2}, v{E+4}")
    A(f"  v_max_f32 v{MM}, v{MM}, v{E+6}")
    for k in range(4):
        A(f"  v_sub_f32 v{E+2*k}, v{E+2*k}, v{MM}")
    for k in range(4):
        A(f"  v_exp_f32 v{E+2*k}, v{E+2*k}")
    for k in range(4):
        A(f"  s_waitcnt lgkmcnt({3-k})")
        for j in range(4):
            if k == 0:
                A(f"  v_mul_f32 v{R+j}, v{E}, v{R+j}")
            else:
                A(f"  v_fmac_f32 v{R+j}, v{E+2*k}, v{R+4*k+j}")
    A(f"  global_store_dwordx4 v{vAWS}, {vr(R,4)}, s[22:23] sc1")
    A(f"  v_mul_f32 v{LL}, v{E}, v{E+1}")
    for k in range(1, 4):
        A(f"  v_fmac_f32 v{LL}, v{E+2*k}, v{E+2*k+1}")
    A(f"  v_cndmask_b32 v{LL}, v{LL}, v{MM}, vcc")
    A("  s_mov_b32 s64, 3")
    A("  s_mov_b32 s65, 3")
    A("  s_mov_b64 exec, s[64:65]")
    A(f"  global_store_dword v{vAWM}, v{LL}, s[22:23] sc1")
    A("  s_mov_b64 exec, -1")
    if o.tail == "none":
        stamp()
        A("  s_mov_b32 s69, 0")
        A("  s_branch L_fin")
    A("  s_lshl_b32 s64, s24, 6")
    A(f"  v_mov_b32 v{vY}, s64")
    A(f"  v_mov_b32 v{vY+1}, 1")
    A("  v_and_b32 v1, 31, v0")
    A("  v_lshrrev_b32 v2, 5, v0")
    A("  v_and_b32 v3, 63, v0")
    A("  v_lshlrev_b32 v4, 15, v2")
    A("  v_lshl_add_u32 v4, v1, 4, v4")
    A("  s_lshl_b32 s66, s24, 18")
    A("  s_add_u32 s66, s66, 0x1000")
    A("  v_add_u32 v4, s66, v4")
    A("  v_add_u32 v5, 0x2000, v4")
    A("  v_add_u32 v6, 0x4000, v4")
    A("  v_add_u32 v7, 0x6000, v4")
    A(f"  s_add_u32 s68, s63, {WS_M}")
    A("  v_lshl_add_u32 v8, v3, 2, s68")
    A("  v_lshl_add_u32 v9, v2, 5, s68")
    A(f"  v_add_u32 v14, {WS_L-WS_M}, v8")
    A("  s_waitcnt vmcnt(0)")
    A("  s_barrier")
    if o.tail != "none":
        stamp()
    A("  s_cmp_lg_u32 s3, 0")
    A("  s_cbranch_scc1 L_wait")
    A("  s_mov_b64 exec, 1")
    A(f"  global_atomic_add v{vY+2}, v{vY}, v{vY+1}, s[20:21] sc0 sc1")
    A("  s_waitcnt vmcnt(0)")
    A(f"  v_readfirstlane_b32 s65, v{vY+2}")
    A(f"  ds_write_b32 v{vTK}, v{vY+2}")
    A("  s_cmp_lt_u32 s65, 56")
    A("  s_cbranch_scc1 L_pdone")
    A("  s_cmp_eq_u32 s65, 63")
    A("  s_cbranch_scc1 L_pdone")
    A("L_poll:")
    A(f"  global_load_dword v{vY+2}, v{vY}, s[20:21] sc1")
    A("  s_waitcnt vmcnt(0)")
    A(f"  v_readfirstlane_b32 s66, v{vY+2}")
    A("  s_cmp_ge_u32 s66, 64")
    A("  s_cbranch_scc1 L_pdone")
    if o.psleep:
        A(f"  s_sleep {o.psleep}")
    A("  s_branch L_poll")
    A("L_pdone:")
    A("  s_mov_b64 exec, -1")
    A("  s_waitcnt lgkmcnt(0)")
    A("L_wait:")
    A("  s_barrier")
    A(f"  ds_read_b32 v{vCNT}, v{vTK}")
    A("  s_waitcnt lgkmcnt(0)")
    A(f"  v_readfirstlane_b32 s69, v{vCNT}")
    A("  s_cmp_lt_u32 s69, 56")
    A("  s_cbranch_scc1 L_fin")
    A("  s_sub_u32 s69, s69, 56")
    A("  s_lshl_b32 s67, s69, 8")
    A("  s_add_u32 s44, s22, s67")
    A("  s_addc_u32 s45, s23, 0")
    A("  s_add_u32 s46, s44, s67")
    A("  s_addc_u32 s47, s45, 0")
    A("  global_load_dword v12, v8, s[44:45] sc1")
    A("  global_load_dword v13, v14, s[44:45] sc1")
    A("  global_load_dwordx4 v[16:19], v9, s[44:45] sc1")
    A("  global_load_dwordx4 v[20:23], v9, s[44:45] offset:16 sc1")
    for k in range(8):
        A(f"  global_load_dwordx4 v[{24+4*k}:{27+4*k}], v{4+k//2}, s[46:47] offset:{-4096 if k % 2 == 0 else 0} sc1")
    stamp()
    A("  s_add_u32 s67, s67, s63")
    A("  v_lshlrev_b32 v4, 4, v0")
    A("  v_lshlrev_b32 v6, 3, v0")
    A("  v_lshl_add_u32 v5, v0, 2, s67")
    A("  s_waitcnt vmcnt(10)")

    def allreduce(op, v, t):
        for ror in (8, 4, 2, 1):
            A("  s_nop 1")
            A(f"  {op}_dpp v{v}, v{v}, v{v} row_ror:{ror} row_mask:0xf bank_mask:0xf")
        xgroup(op, v, t)
    A("  v_mov_b32 v14, v12")
    allreduce("v_max_f32", 14, 15)
    A("  v_sub_f32 v12, v12, v14")
    A("  s_waitcnt vmcnt(8)")
    for k in range(8):
        A(f"  v_sub_f32 v{16+k}, v{16+k}, v14")
    A("  v_exp_f32 v12, v12")
    for k in range(8):
        A(f"  v_exp_f32 v{16+k}, v{16+k}")
    A("  v_mul_f32 v13, v12, v13")
    for k in range(8):
        A(f"  s_waitcnt vmcnt({7-k})")
        for j in range(4):
            if k == 0:
                A(f"  v_mul_f32 v{56+j}, v16, v{24+j}")
            else:
                A(f"  v_fmac_f32 v{56+j}, v{16+k}, v{24+4*k+j}")
    A(f"  ds_write_b128 v4, v[56:59] offset:{L_K}")
    allreduce("v_add_f32", 13, 15)
    A("  v_rcp_f32 v13, v13")
    A("  s_waitcnt lgkmcnt(0)")
    A("  s_barrier")
    A("  s_cmp_lg_u32 s3, 0")
    A("  s_cbranch_scc1 L_fin")
    for k in range(8):
        A(f"  ds_read_b64 v[{16+2*k}:{17+2*k}], v6 offset:{L_K+512*k}")
    A("  s_waitcnt lgkmcnt(0)")
    n = 8
    while n > 1:
        n //= 2
        for k in range(n):
            A(f"  v_pk_add_f32 v[{16+2*k}:{17+2*k}], v[{16+2*k}:{17+2*k}], v[{16+2*(k+n)}:{17+2*(k+n)}]")
    A("  v_mul_f32 v16, v13, v16")
    A("  v_mul_f32 v17, v13, v17")
    A("  v_cvt_pk_bf16_f32 v16, v16, v17")
    A("  global_store_dword v5, v16, s[18:19]")
    A("L_fin:")
    if o.stamp:
        A("  s_waitcnt vmcnt(0)")
        stamp()
        A("  s_getreg_b32 s68, hwreg(HW_REG_XCC_ID)")
        A("  s_waitcnt lgkmcnt(0)")
        A("  v_and_b32 v1, 63, v0")
        A("  v_mov_b32 v20, 0")
        for i in range(nst[0]):
            A(f"  v_writelane_b32 v20, s{70+2*i}, {i}")
        A("  s_sub_u32 s92, s92, s90")
        A("  v_writelane_b32 v20, s92, 12")
        A("  v_writelane_b32 v20, s68, 14")
        A("  v_writelane_b32 v20, s69, 15")
        A("  s_lshl_b32 s68, s2, 2")
        A("  s_add_u32 s68, s68, s3")
        A("  s_lshl_b32 s68, s68, 6")
        A(f"  s_add_u32 s68, s68, {2<<20}")
        A("  v_lshl_add_u32 v21, v1, 2, s68")
        A("  v_cmp_gt_u32 vcc, 16, v1")
        A("  s_and_saveexec_b64 s[66:67], vcc")
        A("  global_store_dword v21, v20, s[22:23]")
    A("L_end:")
    A("  s_endpgm")
    return K, NV, 100 if o.stamp else 72, LDS_BYTES, 256


def generate(o):
    body = []
    A = body.append
    A('.amdgcn_target "amdgcn-amd-amdhsa--gfx950"')
    A(".text")
    k, nv, ns, lds, threads = gen_main(A, o)
    A('.section .rodata,"a"')
    A(".p2align 6")
    descriptor(A, k, nv, ns)
    head = HEADER + f"; @launch grid=(256,1,1) block=({threads},1,1) lds={lds}\n"
    return head + "\n".join(body) + "\n"


if __name__ == "__main__":
    ap = argparse.ArgumentParser()
    ap.add_argument("-o", default="cdna_kernels/" + NAME + ".s")
    ap.add_argument("--flags", default="nt")
    ap.add_argument("--stamp", action="store_true")
    ap.add_argument("--tail", default="atomic")
    ap.add_argument("--pro", type=int, default=1)
    ap.add_argument("--psleep", type=int, default=1)
    ap.add_argument("--align", type=int, default=0)
    ap.add_argument("--mimic", type=int, default=1)
    ap.add_argument("--lag", type=int, default=0)
    o = ap.parse_args()
    open(o.o, "w").write(generate(o))
```

```python
import sys, argparse
NAME = "standalone__kv_cache_quant_int4_int2_kv_with_per_channel_or_per_token_scales__decode"
HEADER = open("cdna_kernels/" + NAME + ".s.ref").read().split("; Override launch")[0]

LOG2E = 0x3fb8aa3b
SCALE = 0x3db504f3
ROW = 288
KT = 8 * ROW
WS_M = 1 << 20
WS_L = WS_M + 8192
L_ML = 0
L_TK = 256
L_K = 512
L_O = L_K + 4 * KT
L_SC = L_O + 16384
SCA = 4096
LDS_BYTES = L_SC + 4 * SCA


def vr(base, n):
    return f"v[{base}:{base+n-1}]" if n > 1 else f"v{base}"


def descriptor(A, name, nv, ns):
    A(f".amdhsa_kernel {name}")
    A(f"  .amdhsa_next_free_vgpr {nv}")
    A(f"  .amdhsa_next_free_sgpr {ns}")
    A(f"  .amdhsa_accum_offset {(nv+3)//4*4}")
    A("  .amdhsa_group_segment_fixed_size 0")
    A("  .amdhsa_kernarg_size 80")
    A("  .amdhsa_user_sgpr_count 2")
    A("  .amdhsa_user_sgpr_kernarg_segment_ptr 1")
    A("  .amdhsa_system_sgpr_workgroup_id_x 1")
    A("  .amdhsa_float_denorm_mode_32 3")
    A(".end_amdhsa_kernel")


def gen_main(A, o):
    ld = o.flags
    nst = [0]

    def stamp():
        if o.stamp:
            A(f"  s_memrealtime s[{70+2*nst[0]}:{71+2*nst[0]}]")
            nst[0] += 1
    vLANE = 1; vG = 2; vC = 3; vOFF = 4; vLW = 5; vLR = 6; vT0 = 7
    vKA = 8; vVA = 9
    vY = 10
    vM = 14; vL = 15
    E = 16
    S = 24
    PB = 28
    vMR = 30
    vST = 31
    VS = 32; VZ = 34
    KS = 36; KZ = 44
    BQ = 52
    AF = 68
    AV = 84
    O = 100
    vAML = 132; vAOW = 133; vAMR = 134; vAOR = 135; vAWS = 136; vAWM = 137; vTK = 138; vCNT = 139
    X = 140
    RAW = AF
    X2 = 172
    NV = 172 + (32 if o.peel else 4 * o.pf)
    K = NAME + "_kernel"
    A(f".globl {K}")
    A(".p2align 8")
    A(f".type {K},@function")
    A(f"{K}:")
    A("  s_cmp_ge_u32 s2, 256")
    A("  s_cbranch_scc1 L_end")
    stamp()
    if o.stamp:
        A("  s_memtime s[90:91]")
        A("  s_mov_b32 s82, 0")
    A("  s_load_dwordx16 s[4:19], s[0:1], 0")
    A("  s_load_dwordx4 s[20:23], s[0:1], 64")
    A(f"  v_lshrrev_b32 v{vT0}, 6, v0")
    A(f"  v_and_b32 v{vLANE}, 63, v0")
    A(f"  v_readfirstlane_b32 s3, v{vT0}")
    A(f"  v_lshrrev_b32 v{vG}, 4, v{vLANE}")
    A(f"  v_and_b32 v{vC}, 15, v{vLANE}")
    A(f"  v_lshlrev_b32 v{vOFF}, 12, v{vG}")
    A(f"  v_lshl_add_u32 v{vOFF}, v{vC}, 4, v{vOFF}")
    A(f"  v_lshl_add_u32 v{vOFF}, v{vT0}, 10, v{vOFF}")
    A(f"  v_lshlrev_b32 v{vST}, 4, v{vLANE}")
    A("  s_lshl_b32 s25, s2, 19")
    A("  s_lshl_b32 s26, s2, 11")
    A("  s_lshr_b32 s24, s2, 6")
    A("  s_lshl_b32 s63, s24, 11")
    A(f"  v_and_b32 v{vLW}, 7, v{vC}")
    A(f"  v_lshlrev_b32 v{vLW}, 8, v{vLW}")
    A(f"  v_lshl_add_u32 v{vLW}, v{vG}, 4, v{vLW}")
    A(f"  v_add_u32 v{vLW}, s63, v{vLW}")
    A(f"  v_add_u32 v{vST}, s26, v{vST}")
    A("  s_mov_b32 s30, 0x80000")
    A("  s_mov_b32 s31, 0x00020000")
    A("  s_mov_b32 s34, 0x80000")
    A("  s_mov_b32 s35, 0x00020000")
    A("  s_mov_b32 s59, 0xffff0000")
    A("  s_mov_b32 s56, 0")
    A("  s_waitcnt lgkmcnt(0)")
    stamp()

    def big(i, soff, base=X):
        r, half = i & 1, (i >> 1) & 1
        srd = 28 if i < 4 else 32
        A(f"  buffer_load_dwordx4 {vr(base+4*i,4)}, v{vOFF}, s[{srd}:{srd+3}], {soff} offen offset:{r*512+half*256} {ld}")

    LAG = o.lag

    def reissue(pos, LAG):
        if pos >= LAG:
            big(pos - LAG, "s56")
        else:
            big(8 - LAG + pos, "s57")

    def kbase():
        A("  s_add_u32 s28, s6, s25")
        A("  s_addc_u32 s29, s7, 0")

    def vbase():
        A("  s_add_u32 s32, s8, s25")
        A("  s_addc_u32 s33, s9, 0")

    def stage_loads():
        A("  s_cmp_eq_u32 s3, 1")
        A("  s_cselect_b64 s[36:37], s[12:13], s[10:11]")
        A("  s_cmp_eq_u32 s3, 2")
        A("  s_cselect_b64 s[36:37], s[14:15], s[36:37]")
        A("  s_cmp_eq_u32 s3, 3")
        A("  s_cselect_b64 s[36:37], s[16:17], s[36:37]")
        for i in range(2):
            A(f"  global_load_dwordx4 {vr(RAW+4*i,4)}, v{vST}, s[36:37] offset:{1024*i} {ld}")

    def q_loads():
        for s in range(4):
            A(f"  global_load_dwordx4 {vr(BQ+4*s,4)}, v{vLW}, s[4:5] offset:{64*s}")
    if o.pro == 0:
        kbase()
        for i in range(4):
            big(i, "0")
        stage_loads()
        vbase()
        q_loads()
        for i in range(4, 8 - LAG):
            big(i, "0")
        W1, W2 = 8, 4
    elif o.pro in (1, 3) and not o.peel:
        stage_loads()
        kbase()
        for i in range(4):
            big(i, "0")
        vbase()
        q_loads()
        for i in range(4, 8 - LAG):
            big(i, "0")
        W1, W2 = 12, 12
    elif o.peel:
        stage_loads()
        kbase()
        for i in range(4):
            big(i, "0", X2)
        vbase()
        q_loads()
        for i in range(4, 8):
            big(i, "0", X2)
        A("  s_movk_i32 s57, 0x4000")
        for i in range(o.peel):
            big(i, "s57")
        W1 = W2 = 12 + o.peel + LAG
    if o.peel:
        pass
    if o.pro == 2:
        kbase()
        big(0, "0")
        stage_loads()
        for i in range(1, 4):
            big(i, "0")
        vbase()
        q_loads()
        for i in range(4, 8 - LAG):
            big(i, "0")
        W1, W2 = 11, 11
    if o.pf:
        A("  s_movk_i32 s57, 0x4000")
    for n in range(o.pf):
        q = 8 - LAG + n
        i, so = (q, "0") if q < 8 else (q - 8, "s57")
        r, half = i & 1, (i >> 1) & 1
        srd = 28 if i < 4 else 32
        A(f"  buffer_load_dwordx4 {vr(X2+4*n,4)}, v{vOFF}, s[{srd}:{srd+3}], {so} offen offset:{r*512+half*256} {o.pfflags}")
    W1 += o.pf
    W2 += o.pf
    A(f"  v_lshlrev_b32 v{vKA}, 4, v{vC}")
    A(f"  v_add_u32 v{vKA}, {L_SC}, v{vKA}")
    A(f"  v_lshlrev_b32 v{vVA}, 5, v{vG}")
    A(f"  v_lshl_add_u32 v{vVA}, v{vT0}, 3, v{vVA}")
    A(f"  v_add_u32 v{vVA}, {L_SC+2*SCA}, v{vVA}")
    A(f"  s_mul_i32 s62, s3, {KT}")
    A(f"  s_add_u32 s62, s62, {L_K}")
    A(f"  v_mul_u32_u24 v{vLW}, {2*ROW}, v{vG}")
    A(f"  v_lshl_add_u32 v{vLW}, v{vC}, 3, v{vLW}")
    A(f"  v_add_u32 v{vLW}, s62, v{vLW}")
    A(f"  v_lshrrev_b32 v{vLR}, 2, v{vC}")
    A(f"  v_lshlrev_b32 v{vLR}, 1, v{vLR}")
    A(f"  v_and_b32 v{vY}, 1, v{vC}")
    A(f"  v_add_u32 v{vLR}, v{vLR}, v{vY}")
    A(f"  v_mul_u32_u24 v{vLR}, {ROW}, v{vLR}")
    A(f"  v_lshl_add_u32 v{vLR}, v{vG}, 4, v{vLR}")
    A(f"  v_add_u32 v{vLR}, s62, v{vLR}")
    A("  s_lshl_b32 s58, s3, 12")
    A(f"  s_add_u32 s58, s58, {L_SC}")
    A(f"  v_lshl_add_u32 v{vST}, v{vLANE}, 5, s58")

    def late_setup():
        A(f"  v_and_b32 v{vY}, 7, v{vC}")
        A(f"  v_lshlrev_b32 v{vAML}, 5, v{vY}")
        A(f"  v_lshl_add_u32 v{vAML}, v{vT0}, 3, v{vAML}")
        A(f"  v_lshlrev_b32 v{vAOW}, 9, v{vY}")
        A(f"  v_lshl_add_u32 v{vAOW}, v{vG}, 6, v{vAOW}")
        A(f"  v_and_b32 v{vY}, 8, v{vC}")
        A(f"  v_lshl_add_u32 v{vAOW}, v{vY}, 5, v{vAOW}")
        A(f"  v_lshl_add_u32 v{vAOW}, v{vT0}, 12, v{vAOW}")
        A(f"  v_add_u32 v{vAOW}, {L_O}, v{vAOW}")
        A(f"  v_lshrrev_b32 v{vY}, 5, v0")
        A(f"  v_lshlrev_b32 v{vAMR}, 5, v{vY}")
        A(f"  v_lshlrev_b32 v{vAOR}, 4, v0")
        A("  s_lshl_b32 s64, s2, 12")
        A(f"  v_add_u32 v{vAWS}, s64, v{vAOR}")
        A(f"  v_add_u32 v{vAOR}, {L_O}, v{vAOR}")
        A("  s_and_b32 s64, s2, 63")
        A("  s_lshl_b32 s64, s64, 2")
        A("  s_add_u32 s64, s64, s63")
        A(f"  s_add_u32 s64, s64, {WS_M}")
        A(f"  v_lshlrev_b32 v{vAWM}, 8, v{vY}")
        A(f"  v_and_b32 v{vY}, 1, v0")
        A(f"  v_lshl_add_u32 v{vAWM}, v{vY}, 13, v{vAWM}")
        A(f"  v_add_u32 v{vAWM}, s64, v{vAWM}")
        A(f"  v_mov_b32 v{vTK}, {L_TK}")
        for i in range(32):
            A(f"  v_mov_b32 v{O+i}, 0")
        for i in range(8):
            A(f"  v_mov_b32 v{AV+2*i+1}, 0")
        A(f"  v_mov_b32 v{PB+1}, 0")
        A(f"  v_mov_b32 v{vL}, 0")
        A(f"  v_mov_b32 v{vMR}, 0xff7fffff")
        A(f"  v_mov_b32 v{vM}, 0xff7fffff")
        A(f"  s_mov_b32 s60, {SCALE:#x}")
        A(f"  s_mov_b32 s61, {LOG2E:#x}")
    late_setup()
    A(f"  s_waitcnt vmcnt({W1-LAG})")
    for i in range(2):
        for j in range(4):
            A(f"  v_lshlrev_b32 v{KS+8*i+2*j}, 16, v{RAW+4*i+j}")
            A(f"  v_and_b32 v{KS+8*i+2*j+1}, s59, v{RAW+4*i+j}")
        A(f"  ds_write_b128 v{vST}, {vr(KS+8*i,4)} offset:{2048*i}")
        A(f"  ds_write_b128 v{vST}, {vr(KS+8*i+4,4)} offset:{2048*i+16}")
    A(f"  s_waitcnt vmcnt({W2-LAG}) lgkmcnt(0)")
    A("  s_barrier")
    stamp()

    def xgroup(op, v, t):
        A(f"  v_mov_b32 v{t}, v{v}")
        A("  s_nop 1")
        A(f"  v_permlane16_swap_b32 v{v}, v{t}")
        A(f"  {op} v{v}, v{v}, v{t}")
        A(f"  v_mov_b32 v{t}, v{v}")
        A("  s_nop 1")
        A(f"  v_permlane32_swap_b32 v{v}, v{t}")
        A(f"  {op} v{v}, v{v}, v{t}")

    def unit_body(first, LAG=o.lag, sfx='', bound=0x80000):
        XB = X2 if first else X
        sfx = 'f' if first else sfx
        extra = list(range(o.peel, 8 - LAG))
        issued = [0]

        def fw(pos):
            if first:
                younger = (7 - pos) + o.peel + issued[0] + (4 if pos < 4 else 0)
                A(f"  s_waitcnt vmcnt({younger})")
            else:
                A(f"  s_waitcnt vmcnt({7-LAG})")

        def fr(pos):
            if first:
                if extra and pos >= 8 - len(list(range(o.peel, 8 - LAG))):
                    big(extra.pop(0), "s56")
                    issued[0] += 1
            else:
                reissue(pos, LAG)
        if o.align:
            A(f".p2align {o.align}")
        A(f"L_unit{sfx}:")
        A(f"  ds_read_b128 {vr(KZ,4)}, v{vKA} offset:{SCA}")
        A(f"  ds_read_b128 {vr(KS,4)}, v{vKA}")
        A(f"  ds_read_b128 {vr(KZ+4,4)}, v{vKA} offset:{SCA+256}")
        A(f"  ds_read_b128 {vr(KS+4,4)}, v{vKA} offset:256")
        A(f"  ds_read_b64 {vr(VS,2)}, v{vVA}")
        A(f"  ds_read_b64 {vr(VZ,2)}, v{vVA} offset:{SCA}")
        if LAG:
            A("  s_mov_b32 s57, s56")
        A("  s_add_u32 s56, s56, 0x4000")
        A("  s_and_b32 s64, s56, 0xc000")
        A("  s_cselect_b32 s64, 0, 512")
        A(f"  v_add_u32 v{vKA}, s64, v{vKA}")
        A(f"  v_add_u32 v{vVA}, 128, v{vVA}")

        def mfma_qk(ss):
            for sx in ss:
                c = "0" if sx == 0 else vr(S, 4)
                A(f"  v_mfma_f32_16x16x32_bf16 {vr(S,4)}, {vr(AF+4*sx,4)}, {vr(BQ+4*sx,4)}, {c}")
        for i in range(4):
            r, half = i & 1, i >> 1
            x = XB + 4 * i
            e = E + 4 * (i & 1)
            y = vY + 2 * (i & 1)
            fw(i)
            for j in range(4):
                A(f"  v_cvt_f32_i32 v{e+j}, v{x+j}")
            fr(i)
            if i == 0:
                A("  s_waitcnt lgkmcnt(0)")
            if o.mimic:
                for j in (0, 2):
                    A(f"  v_pk_add_f32 {vr(e+j,2)}, {vr(e+j,2)}, {vr(KZ+4*half+j,2)} neg_lo:[0,1] neg_hi:[0,1]")
                for j in range(4):
                    A(f"  v_cvt_pk_bf16_f32 v{e+j}, 0, v{e+j}")
                for j in (0, 2):
                    A(f"  v_pk_mul_f32 {vr(e+j,2)}, {vr(e+j,2)}, {vr(KS+4*half+j,2)}")
            else:
                for j in (0, 2):
                    A(f"  v_pk_add_f32 {vr(e+j,2)}, {vr(e+j,2)}, {vr(KZ+4*half+j,2)} neg_lo:[0,1] neg_hi:[0,1]")
                for j in (0, 2):
                    A(f"  v_pk_mul_f32 {vr(e+j,2)}, {vr(e+j,2)}, {vr(KS+4*half+j,2)}")
            A(f"  v_cvt_pk_bf16_f32 v{y}, v{e}, v{e+1}")
            A(f"  v_cvt_pk_bf16_f32 v{y+1}, v{e+2}, v{e+3}")
            A(f"  ds_write_b64 v{vLW}, {vr(y,2)} offset:{r*ROW+half*128}")
            if i & 1:
                for sx in (2 * half, 2 * half + 1):
                    A(f"  ds_read_b128 {vr(AF+4*sx,4)}, v{vLR} offset:{sx*64}")
        def vblock(i):
            r, half = i & 1, i >> 1
            x = XB + 16 + 4 * i
            e = E + 4 * (i & 1)
            fw(4 + i)
            for j in range(4):
                A(f"  v_cvt_f32_i32 v{e+j}, v{x+j}")
            fr(4 + i)
            sel = "op_sel:[0,1] op_sel_hi:[1,1]" if r else "op_sel_hi:[1,0]"
            for j in (0, 2):
                A(f"  v_pk_add_f32 {vr(e+j,2)}, {vr(e+j,2)}, {vr(VZ,2)} {sel} neg_lo:[0,1] neg_hi:[0,1]")
            if r:
                for j in range(4):
                    A(f"  v_cvt_pk_bf16_f32 v{AV+8*half+2*j}, v{E+j}, v{E+4+j}")

        def softmax():
            for j in range(2):
                A(f"  v_cvt_pk_bf16_f32 v{S+j}, 0, v{S+j}")
            for j in range(2):
                A(f"  v_mul_f32 v{S+j}, s60, v{S+j}")
            for j in range(2):
                A(f"  v_cvt_pk_bf16_f32 v{S+j}, 0, v{S+j}")
            A(f"  v_max_f32 v{S+2}, v{S}, v{S+1}")
            A(f"  v_cmp_gt_f32 vcc, v{S+2}, v{vMR}")
            A(f"  s_cbranch_vccz L_nomax{sfx}")
            xgroup("v_max_f32", S + 2, S + 3)
            A(f"  v_max_f32 v{vMR}, v{vMR}, v{S+2}")
            A(f"  v_mul_f32 v{S+2}, s61, v{vMR}")
            A(f"  v_sub_f32 v{S+3}, v{vM}, v{S+2}")
            A(f"  v_exp_f32 v{S+3}, v{S+3}")
            A(f"  v_mov_b32 v{vM}, v{S+2}")
            A(f"  v_mul_f32 v{vL}, v{vL}, v{S+3}")
            for i in range(16):
                A(f"  v_pk_mul_f32 {vr(O+2*i,2)}, {vr(O+2*i,2)}, {vr(S+2,2)} op_sel:[0,1] op_sel_hi:[1,1]")
            A(f"L_nomax{sfx}:")
            for j in range(2):
                A(f"  v_fma_f32 v{S+j}, v{S+j}, s61, -v{vM}")
            for j in range(2):
                A(f"  v_exp_f32 v{S+j}, v{S+j}")
            A(f"  s_cmp_lt_u32 s56, {bound:#x}")
            A(f"  v_add_f32 v{vL}, v{vL}, v{S}")
            A(f"  v_add_f32 v{vL}, v{vL}, v{S+1}")
            A(f"  v_pk_mul_f32 {vr(S,2)}, {vr(S,2)}, {vr(VS,2)}")
            A(f"  v_cvt_pk_bf16_f32 v{PB}, v{S}, v{S+1}")
            A("  s_nop 1")

        def pv(h):
            for j in range(4):
                a = O + 16 * h + 4 * j
                A(f"  v_mfma_f32_16x16x16_bf16 {vr(a,4)}, {vr(AV+8*h+2*j,2)}, {vr(PB,2)}, {vr(a,4)}")
        vblock(0)
        A("  s_waitcnt lgkmcnt(4)")
        mfma_qk((0, 1))
        vblock(1)
        A("  s_waitcnt lgkmcnt(0)")
        mfma_qk((2, 3))
        vblock(2)
        if o.early:
            A("  s_nop 1")
            softmax()
            pv(0)
            vblock(3)
            A("  s_nop 0")
            pv(1)
        else:
            vblock(3)
            softmax()
            pv(0)
            pv(1)
    if o.peel:
        unit_body(True)
    if o.n1:
        unit_body(False, bound=o.n1 * 0x4000)
        A("  s_cbranch_scc1 L_unit")
        for i in range(8 - LAG, 8 - o.lagb):
            big(i, "s56")
        unit_body(False, LAG=o.lagb, sfx="b")
        A("  s_cbranch_scc1 L_unitb")
    else:
        unit_body(False)
        A("  s_cbranch_scc1 L_unit")
    stamp()
    if o.stamp:
        A("  s_memtime s[92:93]")
    TMP = KS
    R = BQ
    xgroup("v_add_f32", vL, vY)
    A(f"  v_cmp_gt_u32 vcc, 8, v{vC}")
    A(f"  ds_write_b64 v{vAML}, {vr(vM,2)}")
    A("  s_nop 0")
    for i in range(4):
        for j in range(4):
            A(f"  v_cndmask_b32 v{TMP+4*i+j}, v{O+16+4*j+i}, v{O+4*j+i}, vcc")
        A(f"  ds_write_b128 v{vAOW}, {vr(TMP+4*i,4)} offset:{16*i}")
    A("  s_waitcnt lgkmcnt(0)")
    A("  s_barrier")
    stamp()
    A(f"  ds_read_b128 {vr(E,4)}, v{vAMR}")
    A(f"  ds_read_b128 {vr(E+4,4)}, v{vAMR} offset:16")
    for k in range(4):
        A(f"  ds_read_b128 {vr(R+4*k,4)}, v{vAOR} offset:{4096*k}")
    MM = S; LL = S + 1
    A(f"  v_and_b32 v{vY}, 1, v0")
    A(f"  v_cmp_eq_u32 vcc, 0, v{vY}")
    A("  s_waitcnt lgkmcnt(4)")
    A(f"  v_max3_f32 v{MM}, v{E}, v{E+2}, v{E+4}")
    A(f"  v_max_f32 v{MM}, v{MM}, v{E+6}")
    for k in range(4):
        A(f"  v_sub_f32 v{E+2*k}, v{E+2*k}, v{MM}")
    for k in range(4):
        A(f"  v_exp_f32 v{E+2*k}, v{E+2*k}")
    for k in range(4):
        A(f"  s_waitcnt lgkmcnt({3-k})")
        for j in range(4):
            if k == 0:
                A(f"  v_mul_f32 v{R+j}, v{E}, v{R+j}")
            else:
                A(f"  v_fmac_f32 v{R+j}, v{E+2*k}, v{R+4*k+j}")
    A(f"  global_store_dwordx4 v{vAWS}, {vr(R,4)}, s[22:23] sc1")
    A(f"  v_mul_f32 v{LL}, v{E}, v{E+1}")
    for k in range(1, 4):
        A(f"  v_fmac_f32 v{LL}, v{E+2*k}, v{E+2*k+1}")
    A(f"  v_cndmask_b32 v{LL}, v{LL}, v{MM}, vcc")
    A("  s_mov_b32 s64, 3")
    A("  s_mov_b32 s65, 3")
    A("  s_mov_b64 exec, s[64:65]")
    A(f"  global_store_dword v{vAWM}, v{LL}, s[22:23] sc1")
    A("  s_mov_b64 exec, -1")
    if o.tail == "none":
        stamp()
        A("  s_mov_b32 s69, 0")
        A("  s_branch L_fin")
    A("  s_lshl_b32 s64, s24, 6")
    A(f"  v_mov_b32 v{vY}, s64")
    A(f"  v_mov_b32 v{vY+1}, 1")
    A("  v_and_b32 v1, 31, v0")
    A("  v_lshrrev_b32 v2, 5, v0")
    A("  v_and_b32 v3, 63, v0")
    A("  v_lshlrev_b32 v4, 15, v2")
    A("  v_lshl_add_u32 v4, v1, 4, v4")
    A("  s_lshl_b32 s66, s24, 18")
    A("  s_add_u32 s66, s66, 0x1000")
    A("  v_add_u32 v4, s66, v4")
    A("  v_add_u32 v5, 0x2000, v4")
    A("  v_add_u32 v6, 0x4000, v4")
    A("  v_add_u32 v7, 0x6000, v4")
    A(f"  s_add_u32 s68, s63, {WS_M}")
    A("  v_lshl_add_u32 v8, v3, 2, s68")
    A("  v_lshl_add_u32 v9, v2, 5, s68")
    A(f"  v_add_u32 v14, {WS_L-WS_M}, v8")
    A("  s_waitcnt vmcnt(0)")
    A("  s_barrier")
    if o.tail != "none":
        stamp()
    A("  s_cmp_lg_u32 s3, 0")
    A("  s_cbranch_scc1 L_wait")
    A("  s_mov_b64 exec, 1")
    A(f"  global_atomic_add v{vY+2}, v{vY}, v{vY+1}, s[20:21] sc0 sc1")
    A("  s_waitcnt vmcnt(0)")
    A(f"  v_readfirstlane_b32 s65, v{vY+2}")
    A(f"  ds_write_b32 v{vTK}, v{vY+2}")
    A("  s_cmp_lt_u32 s65, 56")
    A("  s_cbranch_scc1 L_pdone")
    A("  s_cmp_eq_u32 s65, 63")
    A("  s_cbranch_scc1 L_pdone")
    A("L_poll:")
    A(f"  global_load_dword v{vY+2}, v{vY}, s[20:21] sc1")
    A("  s_waitcnt vmcnt(0)")
    A(f"  v_readfirstlane_b32 s66, v{vY+2}")
    A("  s_cmp_ge_u32 s66, 64")
    A("  s_cbranch_scc1 L_pdone")
    if o.psleep:
        A(f"  s_sleep {o.psleep}")
    A("  s_branch L_poll")
    A("L_pdone:")
    A("  s_mov_b64 exec, -1")
    A("  s_waitcnt lgkmcnt(0)")
    A("L_wait:")
    A("  s_barrier")
    A(f"  ds_read_b32 v{vCNT}, v{vTK}")
    A("  s_waitcnt lgkmcnt(0)")
    A(f"  v_readfirstlane_b32 s69, v{vCNT}")
    A("  s_cmp_lt_u32 s69, 56")
    A("  s_cbranch_scc1 L_fin")
    A("  s_sub_u32 s69, s69, 56")
    A("  s_lshl_b32 s67, s69, 8")
    A("  s_add_u32 s44, s22, s67")
    A("  s_addc_u32 s45, s23, 0")
    A("  s_add_u32 s46, s44, s67")
    A("  s_addc_u32 s47, s45, 0")
    A("  global_load_dword v12, v8, s[44:45] sc1")
    A("  global_load_dword v13, v14, s[44:45] sc1")
    A("  global_load_dwordx4 v[16:19], v9, s[44:45] sc1")
    A("  global_load_dwordx4 v[20:23], v9, s[44:45] offset:16 sc1")
    for k in range(8):
        A(f"  global_load_dwordx4 v[{24+4*k}:{27+4*k}], v{4+k//2}, s[46:47] offset:{-4096 if k % 2 == 0 else 0} sc1")
    stamp()
    A("  s_add_u32 s67, s67, s63")
    A("  v_lshlrev_b32 v4, 4, v0")
    A("  v_lshlrev_b32 v6, 3, v0")
    A("  v_lshl_add_u32 v5, v0, 2, s67")
    A("  s_waitcnt vmcnt(10)")

    def allreduce(op, v, t):
        for ror in (8, 4, 2, 1):
            A("  s_nop 1")
            A(f"  {op}_dpp v{v}, v{v}, v{v} row_ror:{ror} row_mask:0xf bank_mask:0xf")
        xgroup(op, v, t)
    A("  v_mov_b32 v14, v12")
    allreduce("v_max_f32", 14, 15)
    A("  v_sub_f32 v12, v12, v14")
    A("  s_waitcnt vmcnt(8)")
    for k in range(8):
        A(f"  v_sub_f32 v{16+k}, v{16+k}, v14")
    A("  v_exp_f32 v12, v12")
    for k in range(8):
        A(f"  v_exp_f32 v{16+k}, v{16+k}")
    A("  v_mul_f32 v13, v12, v13")
    for k in range(8):
        A(f"  s_waitcnt vmcnt({7-k})")
        for j in range(4):
            if k == 0:
                A(f"  v_mul_f32 v{56+j}, v16, v{24+j}")
            else:
                A(f"  v_fmac_f32 v{56+j}, v{16+k}, v{24+4*k+j}")
    A(f"  ds_write_b128 v4, v[56:59] offset:{L_K}")
    allreduce("v_add_f32", 13, 15)
    A("  v_rcp_f32 v13, v13")
    A("  s_waitcnt lgkmcnt(0)")
    A("  s_barrier")
    A("  s_cmp_lg_u32 s3, 0")
    A("  s_cbranch_scc1 L_fin")
    for k in range(8):
        A(f"  ds_read_b64 v[{16+2*k}:{17+2*k}], v6 offset:{L_K+512*k}")
    A("  s_waitcnt lgkmcnt(0)")
    n = 8
    while n > 1:
        n //= 2
        for k in range(n):
            A(f"  v_pk_add_f32 v[{16+2*k}:{17+2*k}], v[{16+2*k}:{17+2*k}], v[{16+2*(k+n)}:{17+2*(k+n)}]")
    A("  v_mul_f32 v16, v13, v16")
    A("  v_mul_f32 v17, v13, v17")
    A("  v_cvt_pk_bf16_f32 v16, v16, v17")
    A("  global_store_dword v5, v16, s[18:19]")
    A("L_fin:")
    if o.stamp:
        A("  s_waitcnt vmcnt(0)")
        stamp()
        A("  s_getreg_b32 s68, hwreg(HW_REG_XCC_ID)")
        A("  s_waitcnt lgkmcnt(0)")
        A("  v_and_b32 v1, 63, v0")
        A("  v_mov_b32 v20, 0")
        for i in range(nst[0]):
            A(f"  v_writelane_b32 v20, s{70+2*i}, {i}")
        A("  s_sub_u32 s92, s92, s90")
        A("  v_writelane_b32 v20, s92, 12")
        A("  v_writelane_b32 v20, s68, 14")
        A("  v_writelane_b32 v20, s69, 15")
        A("  s_lshl_b32 s68, s2, 2")
        A("  s_add_u32 s68, s68, s3")
        A("  s_lshl_b32 s68, s68, 6")
        A(f"  s_add_u32 s68, s68, {2<<20}")
        A("  v_lshl_add_u32 v21, v1, 2, s68")
        A("  v_cmp_gt_u32 vcc, 16, v1")
        A("  s_and_saveexec_b64 s[66:67], vcc")
        A("  global_store_dword v21, v20, s[22:23]")
    A("L_end:")
    A("  s_endpgm")
    return K, NV, 100 if o.stamp else 72, LDS_BYTES, 256


def generate(o):
    body = []
    A = body.append
    A('.amdgcn_target "amdgcn-amd-amdhsa--gfx950"')
    A(".text")
    k, nv, ns, lds, threads = gen_main(A, o)
    A('.section .rodata,"a"')
    A(".p2align 6")
    descriptor(A, k, nv, ns)
    head = HEADER + f"; @launch grid=(256,1,1) block=({threads},1,1) lds={lds}\n"
    return head + "\n".join(body) + "\n"


if __name__ == "__main__":
    ap = argparse.ArgumentParser()
    ap.add_argument("-o", default="cdna_kernels/" + NAME + ".s")
    ap.add_argument("--flags", default="nt")
    ap.add_argument("--stamp", action="store_true")
    ap.add_argument("--tail", default="atomic")
    ap.add_argument("--pro", type=int, default=1)
    ap.add_argument("--psleep", type=int, default=2)
    ap.add_argument("--align", type=int, default=0)
    ap.add_argument("--mimic", type=int, default=1)
    ap.add_argument("--lag", type=int, default=2)
    ap.add_argument("--early", type=int, default=1)
    ap.add_argument("--pf", type=int, default=0)
    ap.add_argument("--peel", type=int, default=0)
    ap.add_argument("--n1", type=int, default=0)
    ap.add_argument("--lagb", type=int, default=0)
    ap.add_argument("--pfflags", default="nt")
    o = ap.parse_args()
    open(o.o, "w").write(generate(o))
```

```python
import sys, argparse
NAME = "standalone__kv_cache_quant_int4_int2_kv_with_per_channel_or_per_token_scales__decode"
HEADER = open("cdna_kernels/" + NAME + ".s.ref").read().split("; Override launch")[0]

LOG2E = 0x3fb8aa3b
SCALE = 0x3db504f3
ROW = 288
KT = 16 * ROW
WS_M = 1 << 20
WS_L = WS_M + 8192
L_ML = 0
L_TK = 256
L_K = 512
L_SC = L_K + 4 * KT
SCA = 4096
L_T = L_SC + 4 * SCA
TW = 16384
LDS_BYTES = L_T + 4 * TW


def vr(base, n):
    return f"v[{base}:{base+n-1}]" if n > 1 else f"v{base}"


def descriptor(A, name, nv, ns):
    A(f".amdhsa_kernel {name}")
    A(f"  .amdhsa_next_free_vgpr {nv}")
    A(f"  .amdhsa_next_free_sgpr {ns}")
    A(f"  .amdhsa_accum_offset {(nv+3)//4*4}")
    A("  .amdhsa_group_segment_fixed_size 0")
    A("  .amdhsa_kernarg_size 80")
    A("  .amdhsa_user_sgpr_count 2")
    A("  .amdhsa_user_sgpr_kernarg_segment_ptr 1")
    A("  .amdhsa_system_sgpr_workgroup_id_x 1")
    A("  .amdhsa_float_denorm_mode_32 3")
    A(".end_amdhsa_kernel")


def gen_main(A, o):
    ld = o.flags
    nst = [0]

    def stamp():
        if o.stamp:
            A(f"  s_memrealtime s[{70+2*nst[0]}:{71+2*nst[0]}]")
            nst[0] += 1
    vLANE = 1; vG = 2; vC = 3; vOFF = 4; vLW = 5; vLR = 6; vT0 = 7
    vKA = 8; vVA = 9
    vY = 10
    vM = 14; vL = 15
    E = 16
    S = 24
    PB = 28
    vTA = 30
    vST = 31
    KS = 36; KZ = 44
    VS = 36; VZ = 40
    BQ = 52
    AF = 68
    AV = 84
    O = 100
    vAML = 132; vAOW = 133; vAMR = 134; vAOR = 135; vAWS = 136; vAWM = 137; vTK = 138; vCNT = 139
    X = 140
    RAW = AF
    NV = 172
    K = NAME + "_kernel"
    A(f".globl {K}")
    A(".p2align 8")
    A(f".type {K},@function")
    A(f"{K}:")
    A("  s_cmp_ge_u32 s2, 256")
    A("  s_cbranch_scc1 L_end")
    stamp()
    if o.stamp:
        A("  s_memtime s[90:91]")
        A("  s_mov_b32 s82, 0")
    A("  s_load_dwordx16 s[4:19], s[0:1], 0")
    A("  s_load_dwordx4 s[20:23], s[0:1], 64")
    A(f"  v_lshrrev_b32 v{vT0}, 6, v0")
    A(f"  v_and_b32 v{vLANE}, 63, v0")
    A(f"  v_readfirstlane_b32 s3, v{vT0}")
    A(f"  v_lshrrev_b32 v{vG}, 4, v{vLANE}")
    A(f"  v_and_b32 v{vC}, 15, v{vLANE}")
    A(f"  v_lshlrev_b32 v{vOFF}, 12, v{vG}")
    A(f"  v_lshl_add_u32 v{vOFF}, v{vC}, 4, v{vOFF}")
    A(f"  v_lshl_add_u32 v{vOFF}, v{vT0}, 10, v{vOFF}")
    A(f"  v_lshlrev_b32 v{vST}, 4, v{vLANE}")
    A("  s_lshl_b32 s25, s2, 19")
    A("  s_lshl_b32 s26, s2, 11")
    A("  s_lshr_b32 s24, s2, 6")
    A("  s_lshl_b32 s63, s24, 11")
    A(f"  v_and_b32 v{vLW}, 7, v{vC}")
    A(f"  v_lshlrev_b32 v{vLW}, 8, v{vLW}")
    A(f"  v_lshl_add_u32 v{vLW}, v{vG}, 4, v{vLW}")
    A(f"  v_add_u32 v{vLW}, s63, v{vLW}")
    A(f"  v_add_u32 v{vST}, s26, v{vST}")
    A("  s_mov_b32 s30, 0x80000")
    A("  s_mov_b32 s31, 0x00020000")
    A("  s_mov_b32 s34, 0x80000")
    A("  s_mov_b32 s35, 0x00020000")
    A("  s_mov_b32 s59, 0xffff0000")
    A("  s_mov_b32 s56, 0")
    A("  s_waitcnt lgkmcnt(0)")
    stamp()

    LAG = o.lag

    def ruh(i):
        if o.order == "um":
            return i & 1, i >> 2, (i >> 1) & 1
        return i & 1, (i >> 1) & 1, i >> 2
    H0 = 5 if o.order == "um" else 3

    def big(i, srd, so0, so1):
        r, u, half = ruh(i)
        A(f"  buffer_load_dwordx4 {vr(X+4*i,4)}, v{vOFF}, s[{srd}:{srd+3}], {so1 if u else so0} offen offset:{r*512+half*256} {ld}")

    LAGV = o.lagv if o.lagv >= 0 else LAG
    assert LAGV <= LAG

    def reissue(pos, cur, nxt, LAG=LAG):
        if pos >= LAG:
            big(pos - LAG, nxt, "s56", "s58")
        else:
            big(8 - LAG + pos, cur, "s54", "s57")

    def kbase():
        A("  s_add_u32 s28, s6, s25")
        A("  s_addc_u32 s29, s7, 0")

    def vbase():
        A("  s_add_u32 s32, s8, s25")
        A("  s_addc_u32 s33, s9, 0")

    def stage_loads():
        A("  s_cmp_eq_u32 s3, 1")
        A("  s_cselect_b64 s[40:41], s[12:13], s[10:11]")
        A("  s_cmp_eq_u32 s3, 2")
        A("  s_cselect_b64 s[40:41], s[14:15], s[40:41]")
        A("  s_cmp_eq_u32 s3, 3")
        A("  s_cselect_b64 s[40:41], s[16:17], s[40:41]")
        for i in range(2):
            A(f"  global_load_dwordx4 {vr(RAW+4*i,4)}, v{vST}, s[40:41] offset:{1024*i} {ld}")

    def q_loads():
        for s in range(4):
            A(f"  global_load_dwordx4 {vr(BQ+4*s,4)}, v{vLW}, s[4:5] offset:{64*s}")
    stage_loads()
    kbase()
    A("  s_movk_i32 s58, 0x4000")
    for i in range(8 - LAG):
        big(i, 28, "0", "s58")
    q_loads()
    vbase()
    A("  s_mov_b32 s36, s28")
    A("  s_mov_b32 s37, s29")
    A("  s_mov_b32 s38, 0x80000")
    A("  s_mov_b32 s39, 0x00020000")
    W1 = W2 = 12
    A(f"  v_lshlrev_b32 v{vKA}, 4, v{vC}")
    A(f"  v_add_u32 v{vKA}, {L_SC}, v{vKA}")
    A(f"  v_lshlrev_b32 v{vVA}, 5, v{vG}")
    A(f"  v_lshl_add_u32 v{vVA}, v{vT0}, 3, v{vVA}")
    A(f"  v_add_u32 v{vVA}, {L_SC+2*SCA}, v{vVA}")
    A(f"  s_mul_i32 s62, s3, {KT}")
    A(f"  s_add_u32 s62, s62, {L_K}")
    A(f"  v_mul_u32_u24 v{vLW}, {4*ROW}, v{vG}")
    A(f"  v_lshl_add_u32 v{vLW}, v{vC}, 3, v{vLW}")
    A(f"  v_add_u32 v{vLW}, s62, v{vLW}")
    A(f"  v_mul_u32_u24 v{vLR}, {ROW}, v{vC}")
    A(f"  v_lshl_add_u32 v{vLR}, v{vG}, 4, v{vLR}")
    A(f"  v_add_u32 v{vLR}, s62, v{vLR}")
    A("  s_lshl_b32 s62, s3, 14")
    A(f"  s_add_u32 s62, s62, {L_T}")
    A(f"  v_lshl_add_u32 v{vTA}, v{vLANE}, 4, s62")
    A("  s_lshl_b32 s64, s3, 12")
    A(f"  s_add_u32 s64, s64, {L_SC}")
    A(f"  v_lshl_add_u32 v{vST}, v{vLANE}, 5, s64")

    def late_setup():
        A(f"  v_and_b32 v{vY}, 7, v{vC}")
        A(f"  v_lshlrev_b32 v{vAML}, 5, v{vY}")
        A(f"  v_lshl_add_u32 v{vAML}, v{vT0}, 3, v{vAML}")
        A(f"  v_lshlrev_b32 v{vAOW}, 9, v{vY}")
        A(f"  v_lshl_add_u32 v{vAOW}, v{vG}, 6, v{vAOW}")
        A(f"  v_and_b32 v{vY}, 8, v{vC}")
        A(f"  v_lshl_add_u32 v{vAOW}, v{vY}, 5, v{vAOW}")
        A(f"  v_add_u32 v{vAOW}, s62, v{vAOW}")
        A(f"  v_lshrrev_b32 v{vY}, 5, v0")
        A(f"  v_lshlrev_b32 v{vAMR}, 5, v{vY}")
        A(f"  v_lshlrev_b32 v{vAOR}, 4, v0")
        A("  s_lshl_b32 s64, s2, 12")
        A(f"  v_add_u32 v{vAWS}, s64, v{vAOR}")
        A(f"  v_add_u32 v{vAOR}, {L_T}, v{vAOR}")
        A("  s_and_b32 s64, s2, 63")
        A("  s_lshl_b32 s64, s64, 2")
        A("  s_add_u32 s64, s64, s63")
        A(f"  s_add_u32 s64, s64, {WS_M}")
        A(f"  v_lshlrev_b32 v{vAWM}, 8, v{vY}")
        A(f"  v_and_b32 v{vY}, 1, v0")
        A(f"  v_lshl_add_u32 v{vAWM}, v{vY}, 13, v{vAWM}")
        A(f"  v_add_u32 v{vAWM}, s64, v{vAWM}")
        A(f"  v_mov_b32 v{vTK}, {L_TK}")
        for i in range(32):
            A(f"  v_mov_b32 v{O+i}, 0")
        A(f"  v_mov_b32 v{vL}, 0")
        A(f"  v_mov_b32 v{vM}, 0xff7fffff")
        A(f"  s_mov_b32 s60, {SCALE:#x}")
        A(f"  s_mov_b32 s61, {LOG2E:#x}")
    late_setup()
    A(f"  s_waitcnt vmcnt({W1-LAG})")
    for i in range(2):
        for j in range(4):
            A(f"  v_lshlrev_b32 v{KS+8*i+2*j}, 16, v{RAW+4*i+j}")
            A(f"  v_and_b32 v{KS+8*i+2*j+1}, s59, v{RAW+4*i+j}")
        A(f"  ds_write_b128 v{vST}, {vr(KS+8*i,4)} offset:{2048*i}")
        A(f"  ds_write_b128 v{vST}, {vr(KS+8*i+4,4)} offset:{2048*i+16}")
    A(f"  s_waitcnt vmcnt({W2-LAG}) lgkmcnt(0)")
    A("  s_barrier")
    stamp()

    def xgroup(op, v, t):
        A(f"  v_mov_b32 v{t}, v{v}")
        A("  s_nop 1")
        A(f"  v_permlane16_swap_b32 v{v}, v{t}")
        A(f"  {op} v{v}, v{v}, v{t}")
        A(f"  v_mov_b32 v{t}, v{v}")
        A("  s_nop 1")
        A(f"  v_permlane32_swap_b32 v{v}, v{t}")
        A(f"  {op} v{v}, v{v}, v{t}")

    A("L_kloop:")
    A(f"  ds_read_b128 {vr(KZ,4)}, v{vKA} offset:{SCA}")
    A(f"  ds_read_b128 {vr(KS,4)}, v{vKA}")
    A(f"  ds_read_b128 {vr(KZ+4,4)}, v{vKA} offset:{SCA+256}")
    A(f"  ds_read_b128 {vr(KS+4,4)}, v{vKA} offset:256")
    A("  s_mov_b32 s54, s56")
    A("  s_mov_b32 s57, s58")
    A("  s_add_u32 s56, s56, 0x8000")
    A("  s_and_b32 s64, s56, 0x8000")
    A("  s_cselect_b32 s64, 0, 512")
    A(f"  v_add_u32 v{vKA}, s64, v{vKA}")
    A("  s_cmp_lt_u32 s56, 0x80000")
    A("  s_cbranch_scc1 L_knosw")
    A("  s_mov_b32 s36, s32")
    A("  s_mov_b32 s37, s33")
    A("  s_mov_b32 s56, 0")
    A("L_knosw:")
    A("  s_add_u32 s58, s56, 0x4000")

    def mfma_qk(ss):
        for sx in ss:
            c = "0" if sx == 0 else vr(S, 4)
            A(f"  v_mfma_f32_16x16x32_bf16 {vr(S,4)}, {vr(AF+4*sx,4)}, {vr(BQ+4*sx,4)}, {c}")
    for i in range(8):
        r, u, half = ruh(i)
        x = X + 4 * i
        e = E + 4 * (i & 1)
        y = vY + 2 * (i & 1)
        A(f"  s_waitcnt vmcnt({7-LAG})")
        for j in range(4):
            A(f"  v_cvt_f32_i32 v{e+j}, v{x+j}")
        reissue(i, 28, 36)
        if i == 0:
            A("  s_waitcnt lgkmcnt(0)")
        for j in (0, 2):
            A(f"  v_pk_add_f32 {vr(e+j,2)}, {vr(e+j,2)}, {vr(KZ+4*half+j,2)} neg_lo:[0,1] neg_hi:[0,1]")
        for j in range(4):
            A(f"  v_cvt_pk_bf16_f32 v{e+j}, 0, v{e+j}")
        for j in (0, 2):
            A(f"  v_pk_mul_f32 {vr(e+j,2)}, {vr(e+j,2)}, {vr(KS+4*half+j,2)}")
        A(f"  v_cvt_pk_bf16_f32 v{y}, v{e}, v{e+1}")
        A(f"  v_cvt_pk_bf16_f32 v{y+1}, v{e+2}, v{e+3}")
        A(f"  ds_write_b64 v{vLW}, {vr(y,2)} offset:{(2*u+r)*ROW+half*128}")
        if i in (H0, 7):
            for sx in (2 * half, 2 * half + 1):
                A(f"  ds_read_b128 {vr(AF+4*sx,4)}, v{vLR} offset:{sx*64}")
        if i == H0 + 2:
            A(f"  s_waitcnt lgkmcnt({4 if i == 7 else 2})")
            mfma_qk((0, 1))
    A("  s_waitcnt lgkmcnt(0)")
    mfma_qk((2, 3))
    A("  s_cmp_lg_u32 s56, 0")
    A("  s_nop 6")
    for j in range(4):
        A(f"  v_cvt_pk_bf16_f32 v{S+j}, 0, v{S+j}")
    for j in range(4):
        A(f"  v_mul_f32 v{S+j}, s60, v{S+j}")
    for j in range(4):
        A(f"  v_cvt_pk_bf16_f32 v{S+j}, 0, v{S+j}")
    A(f"  ds_write_b128 v{vTA}, {vr(S,4)}")
    A(f"  v_max3_f32 v{vM}, v{vM}, v{S}, v{S+1}")
    A(f"  v_max3_f32 v{vM}, v{vM}, v{S+2}, v{S+3}")
    A(f"  v_add_u32 v{vTA}, 1024, v{vTA}")
    A("  s_cbranch_scc1 L_kloop")
    xgroup("v_max_f32", vM, vY)
    A(f"  v_mul_f32 v{vM}, s61, v{vM}")
    A(f"  v_subrev_u32 v{vTA}, {TW}, v{vTA}")
    for i in range(8 - LAG, 8 - LAGV):
        big(i, 32, "s56", "s58")
    A("L_vloop:")
    A(f"  ds_read_b64 {vr(VZ,2)}, v{vVA} offset:{SCA}")
    A(f"  ds_read_b64 {vr(VZ+2,2)}, v{vVA} offset:{SCA+128}")
    A(f"  ds_read_b128 {vr(S,4)}, v{vTA}")
    A(f"  ds_read_b64 {vr(VS,2)}, v{vVA}")
    A(f"  ds_read_b64 {vr(VS+2,2)}, v{vVA} offset:128")
    A("  s_mov_b32 s54, s56")
    A("  s_mov_b32 s57, s58")
    A("  s_add_u32 s56, s56, 0x8000")
    A("  s_add_u32 s58, s56, 0x4000")
    A(f"  v_add_u32 v{vVA}, 256, v{vVA}")
    A(f"  v_add_u32 v{vTA}, 1024, v{vTA}")
    A("  s_cmp_lt_u32 s56, 0x80000")
    for i in range(8):
        r, u, half = ruh(i)
        x = X + 4 * i
        e = E + 4 * (i & 1)
        A(f"  s_waitcnt vmcnt({7-LAGV})")
        for j in range(4):
            A(f"  v_cvt_f32_i32 v{e+j}, v{x+j}")
        reissue(i, 32, 32, LAGV)
        if i == 0:
            A("  s_waitcnt lgkmcnt(0)")
        sel = "op_sel:[0,1] op_sel_hi:[1,1]" if r else "op_sel_hi:[1,0]"
        for j in (0, 2):
            A(f"  v_pk_add_f32 {vr(e+j,2)}, {vr(e+j,2)}, {vr(VZ+2*u,2)} {sel} neg_lo:[0,1] neg_hi:[0,1]")
        if r:
            for j in range(4):
                A(f"  v_cvt_pk_bf16_f32 v{AV+8*half+2*j+u}, v{E+j}, v{E+4+j}")
        if i == 0:
            for j in range(4):
                A(f"  v_fma_f32 v{S+j}, v{S+j}, s61, -v{vM}")
            for j in range(4):
                A(f"  v_exp_f32 v{S+j}, v{S+j}")
        if i == 1:
            A(f"  v_add_f32 v{vY}, v{S}, v{S+1}")
            A(f"  v_add_f32 v{vY+1}, v{S+2}, v{S+3}")
            A(f"  v_pk_mul_f32 {vr(S,2)}, {vr(S,2)}, {vr(VS,2)}")
            A(f"  v_pk_mul_f32 {vr(S+2,2)}, {vr(S+2,2)}, {vr(VS+2,2)}")
            A(f"  v_add_f32 v{vL}, v{vL}, v{vY}")
            A(f"  v_cvt_pk_bf16_f32 v{PB}, v{S}, v{S+1}")
            A(f"  v_cvt_pk_bf16_f32 v{PB+1}, v{S+2}, v{S+3}")
            A(f"  v_add_f32 v{vL}, v{vL}, v{vY+1}")
        if i in (H0, 7):
            A("  s_nop 0")
            for j in range(4):
                a = O + 16 * half + 4 * j
                A(f"  v_mfma_f32_16x16x16_bf16 {vr(a,4)}, {vr(AV+8*half+2*j,2)}, {vr(PB,2)}, {vr(a,4)}")
    A("  s_cbranch_scc1 L_vloop")
    stamp()
    if o.stamp:
        A("  s_memtime s[92:93]")
    TMP = AF
    R = BQ
    xgroup("v_add_f32", vL, vY)
    A(f"  v_cmp_gt_u32 vcc, 8, v{vC}")
    A(f"  ds_write_b64 v{vAML}, {vr(vM,2)}")
    A("  s_nop 0")
    for i in range(4):
        for j in range(4):
            A(f"  v_cndmask_b32 v{TMP+4*i+j}, v{O+16+4*j+i}, v{O+4*j+i}, vcc")
        A(f"  ds_write_b128 v{vAOW}, {vr(TMP+4*i,4)} offset:{16*i}")
    A("  s_waitcnt lgkmcnt(0)")
    A("  s_barrier")
    stamp()
    A(f"  ds_read_b128 {vr(E,4)}, v{vAMR}")
    A(f"  ds_read_b128 {vr(E+4,4)}, v{vAMR} offset:16")
    for k in range(4):
        A(f"  ds_read_b128 {vr(R+4*k,4)}, v{vAOR} offset:{TW*k}")
    MM = S; LL = S + 1
    A(f"  v_and_b32 v{vY}, 1, v0")
    A(f"  v_cmp_eq_u32 vcc, 0, v{vY}")
    A("  s_waitcnt lgkmcnt(4)")
    A(f"  v_max3_f32 v{MM}, v{E}, v{E+2}, v{E+4}")
    A(f"  v_max_f32 v{MM}, v{MM}, v{E+6}")
    for k in range(4):
        A(f"  v_sub_f32 v{E+2*k}, v{E+2*k}, v{MM}")
    for k in range(4):
        A(f"  v_exp_f32 v{E+2*k}, v{E+2*k}")
    for k in range(4):
        A(f"  s_waitcnt lgkmcnt({3-k})")
        for j in range(4):
            if k == 0:
                A(f"  v_mul_f32 v{R+j}, v{E}, v{R+j}")
            else:
                A(f"  v_fmac_f32 v{R+j}, v{E+2*k}, v{R+4*k+j}")
    A(f"  global_store_dwordx4 v{vAWS}, {vr(R,4)}, s[22:23] sc1")
    A(f"  v_mul_f32 v{LL}, v{E}, v{E+1}")
    for k in range(1, 4):
        A(f"  v_fmac_f32 v{LL}, v{E+2*k}, v{E+2*k+1}")
    A(f"  v_cndmask_b32 v{LL}, v{LL}, v{MM}, vcc")
    A("  s_mov_b32 s64, 3")
    A("  s_mov_b32 s65, 3")
    A("  s_mov_b64 exec, s[64:65]")
    A(f"  global_store_dword v{vAWM}, v{LL}, s[22:23] sc1")
    A("  s_mov_b64 exec, -1")
    if o.tail == "none":
        stamp()
        A("  s_mov_b32 s69, 0")
        A("  s_branch L_fin")
    A("  s_lshl_b32 s64, s24, 6")
    A(f"  v_mov_b32 v{vY}, s64")
    A(f"  v_mov_b32 v{vY+1}, 1")
    A("  v_and_b32 v1, 31, v0")
    A("  v_lshrrev_b32 v2, 5, v0")
    A("  v_and_b32 v3, 63, v0")
    A("  v_lshlrev_b32 v4, 15, v2")
    A("  v_lshl_add_u32 v4, v1, 4, v4")
    A("  s_lshl_b32 s66, s24, 18")
    A("  s_add_u32 s66, s66, 0x1000")
    A("  v_add_u32 v4, s66, v4")
    A("  v_add_u32 v5, 0x2000, v4")
    A("  v_add_u32 v6, 0x4000, v4")
    A("  v_add_u32 v7, 0x6000, v4")
    A(f"  s_add_u32 s68, s63, {WS_M}")
    A("  v_lshl_add_u32 v8, v3, 2, s68")
    A("  v_lshl_add_u32 v9, v2, 5, s68")
    A(f"  v_add_u32 v14, {WS_L-WS_M}, v8")
    A("  s_waitcnt vmcnt(0)")
    A("  s_barrier")
    if o.tail != "none":
        stamp()
    A("  s_cmp_lg_u32 s3, 0")
    A("  s_cbranch_scc1 L_wait")
    A("  s_mov_b64 exec, 1")
    A(f"  global_atomic_add v{vY+2}, v{vY}, v{vY+1}, s[20:21] sc0 sc1")
    A("  s_waitcnt vmcnt(0)")
    A(f"  v_readfirstlane_b32 s65, v{vY+2}")
    A(f"  ds_write_b32 v{vTK}, v{vY+2}")
    A("  s_cmp_lt_u32 s65, 56")
    A("  s_cbranch_scc1 L_pdone")
    A("  s_cmp_eq_u32 s65, 63")
    A("  s_cbranch_scc1 L_pdone")
    A("L_poll:")
    A(f"  global_load_dword v{vY+2}, v{vY}, s[20:21] sc1")
    A("  s_waitcnt vmcnt(0)")
    A(f"  v_readfirstlane_b32 s66, v{vY+2}")
    A("  s_cmp_ge_u32 s66, 64")
    A("  s_cbranch_scc1 L_pdone")
    if o.psleep:
        A(f"  s_sleep {o.psleep}")
    A("  s_branch L_poll")
    A("L_pdone:")
    A("  s_mov_b64 exec, -1")
    A("  s_waitcnt lgkmcnt(0)")
    A("L_wait:")
    A("  s_barrier")
    A(f"  ds_read_b32 v{vCNT}, v{vTK}")
    A("  s_waitcnt lgkmcnt(0)")
    A(f"  v_readfirstlane_b32 s69, v{vCNT}")
    A("  s_cmp_lt_u32 s69, 56")
    A("  s_cbranch_scc1 L_fin")
    A("  s_sub_u32 s69, s69, 56")
    A("  s_lshl_b32 s67, s69, 8")
    A("  s_add_u32 s44, s22, s67")
    A("  s_addc_u32 s45, s23, 0")
    A("  s_add_u32 s46, s44, s67")
    A("  s_addc_u32 s47, s45, 0")
    A("  global_load_dword v12, v8, s[44:45] sc1")
    A("  global_load_dword v13, v14, s[44:45] sc1")
    A("  global_load_dwordx4 v[16:19], v9, s[44:45] sc1")
    A("  global_load_dwordx4 v[20:23], v9, s[44:45] offset:16 sc1")
    for k in range(8):
        A(f"  global_load_dwordx4 v[{24+4*k}:{27+4*k}], v{4+k//2}, s[46:47] offset:{-4096 if k % 2 == 0 else 0} sc1")
    stamp()
    A("  s_add_u32 s67, s67, s63")
    A("  v_lshlrev_b32 v4, 4, v0")
    A("  v_lshlrev_b32 v6, 3, v0")
    A("  v_lshl_add_u32 v5, v0, 2, s67")
    A("  s_waitcnt vmcnt(10)")

    def allreduce(op, v, t):
        for ror in (8, 4, 2, 1):
            A("  s_nop 1")
            A(f"  {op}_dpp v{v}, v{v}, v{v} row_ror:{ror} row_mask:0xf bank_mask:0xf")
        xgroup(op, v, t)
    A("  v_mov_b32 v14, v12")
    allreduce("v_max_f32", 14, 15)
    A("  v_sub_f32 v12, v12, v14")
    A("  s_waitcnt vmcnt(8)")
    for k in range(8):
        A(f"  v_sub_f32 v{16+k}, v{16+k}, v14")
    A("  v_exp_f32 v12, v12")
    for k in range(8):
        A(f"  v_exp_f32 v{16+k}, v{16+k}")
    A("  v_mul_f32 v13, v12, v13")
    for k in range(8):
        A(f"  s_waitcnt vmcnt({7-k})")
        for j in range(4):
            if k == 0:
                A(f"  v_mul_f32 v{56+j}, v16, v{24+j}")
            else:
                A(f"  v_fmac_f32 v{56+j}, v{16+k}, v{24+4*k+j}")
    A(f"  ds_write_b128 v4, v[56:59] offset:{L_K}")
    allreduce("v_add_f32", 13, 15)
    A("  v_rcp_f32 v13, v13")
    A("  s_waitcnt lgkmcnt(0)")
    A("  s_barrier")
    A("  s_cmp_lg_u32 s3, 0")
    A("  s_cbranch_scc1 L_fin")
    for k in range(8):
        A(f"  ds_read_b64 v[{16+2*k}:{17+2*k}], v6 offset:{L_K+512*k}")
    A("  s_waitcnt lgkmcnt(0)")
    n = 8
    while n > 1:
        n //= 2
        for k in range(n):
            A(f"  v_pk_add_f32 v[{16+2*k}:{17+2*k}], v[{16+2*k}:{17+2*k}], v[{16+2*(k+n)}:{17+2*(k+n)}]")
    A("  v_mul_f32 v16, v13, v16")
    A("  v_mul_f32 v17, v13, v17")
    A("  v_cvt_pk_bf16_f32 v16, v16, v17")
    A("  global_store_dword v5, v16, s[18:19]")
    A("L_fin:")
    if o.stamp:
        A("  s_waitcnt vmcnt(0)")
        stamp()
        A("  s_getreg_b32 s68, hwreg(HW_REG_XCC_ID)")
        A("  s_waitcnt lgkmcnt(0)")
        A("  v_and_b32 v1, 63, v0")
        A("  v_mov_b32 v20, 0")
        for i in range(nst[0]):
            A(f"  v_writelane_b32 v20, s{70+2*i}, {i}")
        A("  s_sub_u32 s92, s92, s90")
        A("  v_writelane_b32 v20, s92, 12")
        A("  v_writelane_b32 v20, s68, 14")
        A("  v_writelane_b32 v20, s69, 15")
        A("  s_lshl_b32 s68, s2, 2")
        A("  s_add_u32 s68, s68, s3")
        A("  s_lshl_b32 s68, s68, 6")
        A(f"  s_add_u32 s68, s68, {2<<20}")
        A("  v_lshl_add_u32 v21, v1, 2, s68")
        A("  v_cmp_gt_u32 vcc, 16, v1")
        A("  s_and_saveexec_b64 s[66:67], vcc")
        A("  global_store_dword v21, v20, s[22:23]")
    A("L_end:")
    A("  s_endpgm")
    return K, NV, 100 if o.stamp else 72, LDS_BYTES, 256


def generate(o):
    body = []
    A = body.append
    A('.amdgcn_target "amdgcn-amd-amdhsa--gfx950"')
    A(".text")
    k, nv, ns, lds, threads = gen_main(A, o)
    A('.section .rodata,"a"')
    A(".p2align 6")
    descriptor(A, k, nv, ns)
    head = HEADER + f"; @launch grid=(256,1,1) block=({threads},1,1) lds={lds}\n"
    head += """; Split-KV decode attention with on-the-fly dequantisation (generated by a hand-written Python generator).
;  * the 4 waves merge in LDS, publish (O, max, sum) to d_ws, arrive on a counter in d_debug; the last 8 arrivers
"""
    return head + "\n".join(body) + "\n"


if __name__ == "__main__":
    ap = argparse.ArgumentParser()
    ap.add_argument("-o", default="cdna_kernels/" + NAME + ".s")
    ap.add_argument("--flags", default="nt")
    ap.add_argument("--stamp", action="store_true")
    ap.add_argument("--tail", default="atomic")
    ap.add_argument("--pro", type=int, default=1)
    ap.add_argument("--psleep", type=int, default=2)
    ap.add_argument("--align", type=int, default=0)
    ap.add_argument("--mimic", type=int, default=1)
    ap.add_argument("--lag", type=int, default=3)
    ap.add_argument("--early", type=int, default=1)
    ap.add_argument("--lagv", type=int, default=2)
    ap.add_argument("--order", default="um")
    ap.add_argument("--pf", type=int, default=0)
    ap.add_argument("--pfflags", default="nt")
    o = ap.parse_args()
    open(o.o, "w").write(generate(o))
```

```python
import sys, argparse
NAME = "standalone__kv_cache_quant_int4_int2_kv_with_per_channel_or_per_token_scales__decode"
HEADER = open("cdna_kernels/" + NAME + ".s.ref").read().split("; Override launch")[0]

LOG2E = 0x3fb8aa3b
SCALE = 0x3db504f3
ROW = 288
KT = 16 * ROW
WS_M = 1 << 20
WS_L = WS_M + 8192
L_ML = 0
L_TK = 256
L_K = 512
L_SC = L_K + 4 * KT
SCA = 4096
L_T = L_SC + 4 * SCA
TW = 16384
LDS_BYTES = L_T + 4 * TW


def vr(base, n):
    return f"v[{base}:{base+n-1}]" if n > 1 else f"v{base}"


def descriptor(A, name, nv, ns):
    A(f".amdhsa_kernel {name}")
    A(f"  .amdhsa_next_free_vgpr {nv}")
    A(f"  .amdhsa_next_free_sgpr {ns}")
    A(f"  .amdhsa_accum_offset {(nv+3)//4*4}")
    A("  .amdhsa_group_segment_fixed_size 0")
    A("  .amdhsa_kernarg_size 80")
    A("  .amdhsa_user_sgpr_count 2")
    A("  .amdhsa_user_sgpr_kernarg_segment_ptr 1")
    A("  .amdhsa_system_sgpr_workgroup_id_x 1")
    A("  .amdhsa_float_denorm_mode_32 3")
    A(".end_amdhsa_kernel")


def gen_main(A, o):
    ld = o.flags
    nst = [0]

    def stamp():
        if o.stamp:
            A(f"  s_memrealtime s[{70+2*nst[0]}:{71+2*nst[0]}]")
            nst[0] += 1
    vLANE = 1; vG = 2; vC = 3; vOFF = 4; vLW = 5; vLR = 6; vT0 = 7
    vKA = 8; vVA = 9
    vY = 10
    vM = 14; vL = 15
    E = 16
    S = 24
    PB = 28
    vTA = 30
    vST = 31
    KS = 36; KZ = 44
    VS = 36; VZ = 40
    BQ = 52
    AF = 68
    AV = 84
    O = 100
    vAML = 132; vAOW = 133; vAMR = 134; vAOR = 135; vAWS = 136; vAWM = 137; vTK = 138; vCNT = 139
    X = 140
    RAW = AF
    NV = 172
    K = NAME + "_kernel"
    A(f".globl {K}")
    A(".p2align 8")
    A(f".type {K},@function")
    A(f"{K}:")
    A("  s_cmp_ge_u32 s2, 256")
    A("  s_cbranch_scc1 L_end")
    stamp()
    if o.stamp:
        pass
        A("  s_mov_b32 s80, 0")
    A("  s_load_dwordx16 s[4:19], s[0:1], 0")
    A("  s_load_dwordx4 s[20:23], s[0:1], 64")
    A(f"  v_lshrrev_b32 v{vT0}, 6, v0")
    A(f"  v_and_b32 v{vLANE}, 63, v0")
    A(f"  v_readfirstlane_b32 s3, v{vT0}")
    A(f"  v_lshrrev_b32 v{vG}, 4, v{vLANE}")
    A(f"  v_and_b32 v{vC}, 15, v{vLANE}")
    A(f"  v_lshlrev_b32 v{vOFF}, 12, v{vG}")
    A(f"  v_lshl_add_u32 v{vOFF}, v{vC}, 4, v{vOFF}")
    if o.wv:
        A(f"  v_and_b32 v{vY+1}, 1, v{vT0}")
        A(f"  v_lshrrev_b32 v{vY+2}, 1, v{vT0}")
        A(f"  v_lshl_add_u32 v{vOFF}, v{vY+1}, 10, v{vOFF}")
        A(f"  v_lshl_add_u32 v{vOFF}, v{vY+2}, 14, v{vOFF}")
    else:
        A(f"  v_lshl_add_u32 v{vOFF}, v{vT0}, 10, v{vOFF}")
    NL = o.p1
    if o.pa:
        A(f"  v_and_b32 v{vST}, 1, v{vG}")
        A(f"  v_lshlrev_b32 v{vST}, 11, v{vST}")
        A(f"  v_lshrrev_b32 v{vY}, 1, v{vG}")
        A(f"  v_lshl_add_u32 v{vST}, v{vY}, 14, v{vST}")
        A(f"  v_lshl_add_u32 v{vST}, v{vC}, 4, v{vST}")
        A("  s_and_b32 s26, s2, 7")
        A("  s_bfe_u32 s25, s2, 0x20003")
        A("  s_lshl_b32 s25, s25, 4")
        A("  s_add_u32 s26, s26, s25")
        A("  s_lshr_b32 s25, s2, 5")
        A("  s_lshl_b32 s25, s25, 8")
        A("  s_add_u32 s26, s26, s25")
        A("  s_lshl_b32 s25, s26, 16")
        A("  s_lshl_b32 s26, s26, 8")
    elif o.p1:
        A(f"  v_lshlrev_b32 v{vST}, {8+NL}, v{vG}")
        A(f"  v_lshl_add_u32 v{vST}, v{vC}, 4, v{vST}")
        A(f"  s_lshr_b32 s25, s2, {NL}")
        A(f"  s_lshl_b32 s25, s25, {NL+3}")
        A(f"  s_and_b32 s26, s2, {(1 << NL) - 1}")
        A("  s_add_u32 s26, s26, s25")
        A("  s_lshl_b32 s25, s26, 16")
        A("  s_lshl_b32 s26, s26, 8")
    else:
        A(f"  v_lshlrev_b32 v{vST}, 4, v{vLANE}")
        A("  s_lshl_b32 s25, s2, 19")
        A("  s_lshl_b32 s26, s2, 11")
    NREC = (7 << (16 + NL)) + 0x10000
    END = 8 << (16 + NL)
    if o.pa:
        NREC = 1 << 27
        END = 1 << 27
    A("  s_lshr_b32 s24, s2, 6")
    A("  s_lshl_b32 s63, s24, 11")
    A(f"  v_and_b32 v{vLW}, 7, v{vC}")
    A(f"  v_lshlrev_b32 v{vLW}, 8, v{vLW}")
    A(f"  v_lshl_add_u32 v{vLW}, v{vG}, 4, v{vLW}")
    A(f"  v_add_u32 v{vLW}, s63, v{vLW}")
    A(f"  v_add_u32 v{vST}, s26, v{vST}")
    A(f"  s_mov_b32 s30, {NREC:#x}")
    A("  s_mov_b32 s31, 0x00020000")
    A(f"  s_mov_b32 s34, {NREC:#x}")
    A("  s_mov_b32 s35, 0x00020000")
    A("  s_mov_b32 s59, 0xffff0000")
    A("  s_mov_b32 s56, 0")
    A("  s_waitcnt lgkmcnt(0)")

    LAG = o.lag

    def ruh(i):
        if o.order == "um":
            return i & 1, i >> 2, (i >> 1) & 1
        return i & 1, (i >> 1) & 1, i >> 2
    H0 = 5 if o.order == "um" else 3

    def big(i, srd, so0, so1):
        r, u, half = ruh(i)
        if o.wv:
            A(f"  buffer_load_dwordx4 {vr(X+4*i,4)}, v{vOFF}, s[{srd}:{srd+3}], {so0} offen offset:{r*512+u*2048+half*256} {ld}")
        else:
            A(f"  buffer_load_dwordx4 {vr(X+4*i,4)}, v{vOFF}, s[{srd}:{srd+3}], {so1 if u else so0} offen offset:{r*512+half*256} {ld}")

    LAGV = o.lagv if o.lagv >= 0 else LAG
    assert LAGV <= LAG

    def reissue(pos, cur, nxt, LAG=LAG):
        if pos >= LAG:
            big(pos - LAG, nxt, "s56", "s58")
        else:
            big(8 - LAG + pos, cur, "s54", "s57")

    def kbase():
        A("  s_lshl_b32 s25, s2, 7")
        A("  s_add_u32 s42, s4, s25")
        A("  s_addc_u32 s43, s5, 0")
        A("  s_load_dwordx16 s[84:99], s[42:43], 0")
        A("  s_mov_b32 s100, 0x8000000")
        A("  s_mov_b32 s28, s6")
        A("  s_mov_b32 s29, s7")
        A("  s_waitcnt lgkmcnt(0)")
        A("  s_mov_b32 s56, s84")

    def vbase():
        A("  s_mov_b32 s32, s8")
        A("  s_mov_b32 s33, s9")

    def stage_loads():
        A("  s_cmp_eq_u32 s3, 1")
        A("  s_cselect_b64 s[40:41], s[12:13], s[10:11]")
        A("  s_cmp_eq_u32 s3, 2")
        A("  s_cselect_b64 s[40:41], s[14:15], s[40:41]")
        A("  s_cmp_eq_u32 s3, 3")
        A("  s_cselect_b64 s[40:41], s[16:17], s[40:41]")
        if o.p1 or o.pa:
            A(f"  v_add_u32 v{vTA}, {0x8000 if o.pa else 1024 << NL}, v{vST}")
            A(f"  global_load_dwordx4 {vr(RAW,4)}, v{vST}, s[40:41] {ld}")
            A(f"  global_load_dwordx4 {vr(RAW+4,4)}, v{vTA}, s[40:41] {ld}")
        else:
            for i in range(2):
                A(f"  global_load_dwordx4 {vr(RAW+4*i,4)}, v{vST}, s[40:41] offset:{1024*i} {ld}")

    def q_loads():
        for s in range(4):
            A(f"  global_load_dwordx4 {vr(BQ+4*s,4)}, v{vLW}, s[4:5] offset:{64*s}")
    stage_loads()
    kbase()
    if not o.wv:
        A("  s_movk_i32 s58, 0x4000")
    for i in range(8 - LAG):
        big(i, 28, "s56", "s58")
    q_loads()
    vbase()
    A("  s_mov_b32 s36, s28")
    A("  s_mov_b32 s37, s29")
    A(f"  s_mov_b32 s38, {NREC:#x}")
    A("  s_mov_b32 s39, 0x00020000")
    W1 = W2 = 12
    A(f"  v_lshlrev_b32 v{vKA}, 4, v{vC}")
    A(f"  v_add_u32 v{vKA}, {L_SC}, v{vKA}")
    A(f"  v_lshlrev_b32 v{vVA}, 5, v{vG}")
    if o.wv:
        A(f"  v_lshl_add_u32 v{vVA}, v{vY+1}, 3, v{vVA}")
        A(f"  v_lshl_add_u32 v{vVA}, v{vY+2}, 7, v{vVA}")
    else:
        A(f"  v_lshl_add_u32 v{vVA}, v{vT0}, 3, v{vVA}")
    A(f"  v_add_u32 v{vVA}, {L_SC+2*SCA}, v{vVA}")
    A(f"  s_mul_i32 s62, s3, {KT}")
    A(f"  s_add_u32 s62, s62, {L_K}")
    A(f"  v_mul_u32_u24 v{vLW}, {4*ROW}, v{vG}")
    A(f"  v_lshl_add_u32 v{vLW}, v{vC}, 3, v{vLW}")
    A(f"  v_add_u32 v{vLW}, s62, v{vLW}")
    A(f"  v_mul_u32_u24 v{vLR}, {ROW}, v{vC}")
    A(f"  v_lshl_add_u32 v{vLR}, v{vG}, 4, v{vLR}")
    A(f"  v_add_u32 v{vLR}, s62, v{vLR}")
    A("  s_lshl_b32 s62, s3, 14")
    A(f"  s_add_u32 s62, s62, {L_T}")
    A(f"  v_lshl_add_u32 v{vTA}, v{vLANE}, 4, s62")
    A("  s_lshl_b32 s64, s3, 12")
    A(f"  s_add_u32 s64, s64, {L_SC}")
    A(f"  v_lshl_add_u32 v{vST}, v{vLANE}, 5, s64")

    def late_setup():
        A(f"  v_and_b32 v{vY}, 7, v{vC}")
        A(f"  v_lshlrev_b32 v{vAML}, 5, v{vY}")
        A(f"  v_lshl_add_u32 v{vAML}, v{vT0}, 3, v{vAML}")
        A(f"  v_lshlrev_b32 v{vAOW}, 9, v{vY}")
        A(f"  v_lshl_add_u32 v{vAOW}, v{vG}, 6, v{vAOW}")
        A(f"  v_and_b32 v{vY}, 8, v{vC}")
        A(f"  v_lshl_add_u32 v{vAOW}, v{vY}, 5, v{vAOW}")
        A(f"  v_add_u32 v{vAOW}, s62, v{vAOW}")
        A(f"  v_lshrrev_b32 v{vY}, 5, v0")
        A(f"  v_lshlrev_b32 v{vAMR}, 5, v{vY}")
        A(f"  v_lshlrev_b32 v{vAOR}, 4, v0")
        A("  s_lshl_b32 s64, s2, 12")
        A(f"  v_add_u32 v{vAWS}, s64, v{vAOR}")
        A(f"  v_add_u32 v{vAOR}, {L_T}, v{vAOR}")
        A("  s_and_b32 s64, s2, 63")
        A("  s_lshl_b32 s64, s64, 2")
        A("  s_add_u32 s64, s64, s63")
        A(f"  s_add_u32 s64, s64, {WS_M}")
        A(f"  v_lshlrev_b32 v{vAWM}, 8, v{vY}")
        A(f"  v_and_b32 v{vY}, 1, v0")
        A(f"  v_lshl_add_u32 v{vAWM}, v{vY}, 13, v{vAWM}")
        A(f"  v_add_u32 v{vAWM}, s64, v{vAWM}")
        A(f"  v_mov_b32 v{vTK}, {L_TK}")
        for i in range(32):
            A(f"  v_mov_b32 v{O+i}, 0")
        A(f"  v_mov_b32 v{vL}, 0")
        A(f"  v_mov_b32 v{vM}, 0xff7fffff")
        A(f"  s_mov_b32 s60, {SCALE:#x}")
        A(f"  s_mov_b32 s61, {LOG2E:#x}")
    late_setup()
    A(f"  s_waitcnt vmcnt({W1-LAG})")
    for i in range(2):
        for j in range(4):
            A(f"  v_lshlrev_b32 v{KS+8*i+2*j}, 16, v{RAW+4*i+j}")
            A(f"  v_and_b32 v{KS+8*i+2*j+1}, s59, v{RAW+4*i+j}")
        A(f"  ds_write_b128 v{vST}, {vr(KS+8*i,4)} offset:{2048*i}")
        A(f"  ds_write_b128 v{vST}, {vr(KS+8*i+4,4)} offset:{2048*i+16}")
    A(f"  s_waitcnt vmcnt({W2-LAG}) lgkmcnt(0)")
    A("  s_barrier")
    stamp()

    def xgroup(op, v, t):
        A(f"  v_mov_b32 v{t}, v{v}")
        A("  s_nop 1")
        A(f"  v_permlane16_swap_b32 v{v}, v{t}")
        A(f"  {op} v{v}, v{v}, v{t}")
        A(f"  v_mov_b32 v{t}, v{v}")
        A("  s_nop 1")
        A(f"  v_permlane32_swap_b32 v{v}, v{t}")
        A(f"  {op} v{v}, v{v}, v{t}")

    def advance():
        if o.pa:
            A("  s_add_u32 s53, s53, 1")
            A("  s_mov_b32 m0, s53")
            A("  s_nop 0")
            A("  s_movrels_b32 s56, s84")
        elif o.p1:
            A("  s_and_b32 s64, s56, 0x8000")
            A(f"  s_cselect_b32 s64, {(0x10000 << NL) - 0x8000:#x}, s55")
            A("  s_add_u32 s56, s56, s64")
        else:
            A("  s_add_u32 s56, s56, 0x8000")
    if o.pa:
        A("  s_mov_b32 s53, 0")
    elif o.p1:
        A("  s_mov_b32 s55, 0x8000")
    A("L_kloop:")
    A(f"  ds_read_b128 {vr(KZ,4)}, v{vKA} offset:{SCA}")
    A(f"  ds_read_b128 {vr(KS,4)}, v{vKA}")
    A(f"  ds_read_b128 {vr(KZ+4,4)}, v{vKA} offset:{SCA+256}")
    A(f"  ds_read_b128 {vr(KS+4,4)}, v{vKA} offset:256")
    A("  s_mov_b32 s54, s56")
    if not o.wv:
        A("  s_mov_b32 s57, s58")
    advance()
    A("  s_and_b32 s64, s53, 1")
    A("  s_cselect_b32 s64, 0, 512")
    A(f"  v_add_u32 v{vKA}, s64, v{vKA}")
    A(f"  s_cmp_lt_u32 s56, {END:#x}")
    A("  s_cbranch_scc1 L_knosw")
    A("  s_mov_b32 s36, s32")
    A("  s_mov_b32 s37, s33")
    A("  s_mov_b32 s56, s84")
    if o.pa:
        A("  s_mov_b32 s53, 0")
    A("L_knosw:")
    if not o.wv:
        A("  s_add_u32 s58, s56, 0x4000")

    def mfma_qk(ss):
        for sx in ss:
            c = "0" if sx == 0 else vr(S, 4)
            A(f"  v_mfma_f32_16x16x32_bf16 {vr(S,4)}, {vr(AF+4*sx,4)}, {vr(BQ+4*sx,4)}, {c}")
    for i in range(8):
        r, u, half = ruh(i)
        x = X + 4 * i
        e = E + 4 * (i & 1)
        y = vY + 2 * (i & 1)
        A(f"  s_waitcnt vmcnt({7-LAG})")
        for j in range(4):
            A(f"  v_cvt_f32_i32 v{e+j}, v{x+j}")
        reissue(i, 28, 36)
        if i == 0:
            A("  s_waitcnt lgkmcnt(0)")
        for j in (0, 2):
            A(f"  v_pk_add_f32 {vr(e+j,2)}, {vr(e+j,2)}, {vr(KZ+4*half+j,2)} neg_lo:[0,1] neg_hi:[0,1]")
        for j in range(4):
            A(f"  v_cvt_pk_bf16_f32 v{e+j}, 0, v{e+j}")
        for j in (0, 2):
            A(f"  v_pk_mul_f32 {vr(e+j,2)}, {vr(e+j,2)}, {vr(KS+4*half+j,2)}")
        A(f"  v_cvt_pk_bf16_f32 v{y}, v{e}, v{e+1}")
        A(f"  v_cvt_pk_bf16_f32 v{y+1}, v{e+2}, v{e+3}")
        A(f"  ds_write_b64 v{vLW}, {vr(y,2)} offset:{(2*u+r)*ROW+half*128}")
        if i in (H0, 7):
            for sx in (2 * half, 2 * half + 1):
                A(f"  ds_read_b128 {vr(AF+4*sx,4)}, v{vLR} offset:{sx*64}")
        if i == H0 + 2:
            A(f"  s_waitcnt lgkmcnt({4 if i == 7 else 2})")
            mfma_qk((0, 1))
    A("  s_waitcnt lgkmcnt(0)")
    mfma_qk((2, 3))
    A("  s_cmp_lg_u32 s53, 0")
    A("  s_nop 6")
    for j in range(4):
        A(f"  v_cvt_pk_bf16_f32 v{S+j}, 0, v{S+j}")
    for j in range(4):
        A(f"  v_mul_f32 v{S+j}, s60, v{S+j}")
    for j in range(4):
        A(f"  v_cvt_pk_bf16_f32 v{S+j}, 0, v{S+j}")
    A(f"  ds_write_b128 v{vTA}, {vr(S,4)}")
    A(f"  v_max3_f32 v{vM}, v{vM}, v{S}, v{S+1}")
    A(f"  v_max3_f32 v{vM}, v{vM}, v{S+2}, v{S+3}")
    A(f"  v_add_u32 v{vTA}, 1024, v{vTA}")
    A("  s_cbranch_scc1 L_kloop")
    xgroup("v_max_f32", vM, vY)
    A(f"  v_mul_f32 v{vM}, s61, v{vM}")
    A(f"  v_subrev_u32 v{vTA}, {TW}, v{vTA}")
    for i in range(8 - LAG, 8 - LAGV):
        big(i, 32, "s56", "s58")
    A("L_vloop:")
    A(f"  ds_read_b64 {vr(VZ,2)}, v{vVA} offset:{SCA}")
    U1 = 16 if o.wv else 128
    A(f"  ds_read_b64 {vr(VZ+2,2)}, v{vVA} offset:{SCA+U1}")
    A(f"  ds_read_b128 {vr(S,4)}, v{vTA}")
    A(f"  ds_read_b64 {vr(VS,2)}, v{vVA}")
    A(f"  ds_read_b64 {vr(VS+2,2)}, v{vVA} offset:{U1}")
    A("  s_mov_b32 s54, s56")
    if not o.wv:
        A("  s_mov_b32 s57, s58")
    advance()
    if not o.wv:
        A("  s_add_u32 s58, s56, 0x4000")
    A(f"  v_add_u32 v{vVA}, 256, v{vVA}")
    A(f"  v_add_u32 v{vTA}, 1024, v{vTA}")
    A(f"  s_cmp_lt_u32 s56, {END:#x}")
    for i in range(8):
        r, u, half = ruh(i)
        x = X + 4 * i
        e = E + 4 * (i & 1)
        A(f"  s_waitcnt vmcnt({7-LAGV})")
        for j in range(4):
            A(f"  v_cvt_f32_i32 v{e+j}, v{x+j}")
        reissue(i, 32, 32, LAGV)
        if i == 0:
            A("  s_waitcnt lgkmcnt(0)")
        sel = "op_sel:[0,1] op_sel_hi:[1,1]" if r else "op_sel_hi:[1,0]"
        for j in (0, 2):
            A(f"  v_pk_add_f32 {vr(e+j,2)}, {vr(e+j,2)}, {vr(VZ+2*u,2)} {sel} neg_lo:[0,1] neg_hi:[0,1]")
        if r:
            for j in range(4):
                A(f"  v_cvt_pk_bf16_f32 v{AV+8*half+2*j+u}, v{E+j}, v{E+4+j}")
        if i == 0:
            for j in range(4):
                A(f"  v_fma_f32 v{S+j}, v{S+j}, s61, -v{vM}")
            for j in range(4):
                A(f"  v_exp_f32 v{S+j}, v{S+j}")
        if i == 1:
            A(f"  v_add_f32 v{vY}, v{S}, v{S+1}")
            A(f"  v_add_f32 v{vY+1}, v{S+2}, v{S+3}")
            A(f"  v_pk_mul_f32 {vr(S,2)}, {vr(S,2)}, {vr(VS,2)}")
            A(f"  v_pk_mul_f32 {vr(S+2,2)}, {vr(S+2,2)}, {vr(VS+2,2)}")
            A(f"  v_add_f32 v{vL}, v{vL}, v{vY}")
            A(f"  v_cvt_pk_bf16_f32 v{PB}, v{S}, v{S+1}")
            A(f"  v_cvt_pk_bf16_f32 v{PB+1}, v{S+2}, v{S+3}")
            A(f"  v_add_f32 v{vL}, v{vL}, v{vY+1}")
        if i in (H0, 7):
            A("  s_nop 0")
            for j in range(4):
                a = O + 16 * half + 4 * j
                A(f"  v_mfma_f32_16x16x16_bf16 {vr(a,4)}, {vr(AV+8*half+2*j,2)}, {vr(PB,2)}, {vr(a,4)}")
    A("  s_cbranch_scc1 L_vloop")
    stamp()
    if o.stamp:
        pass
    TMP = AF
    R = BQ
    xgroup("v_add_f32", vL, vY)
    A(f"  v_cmp_gt_u32 vcc, 8, v{vC}")
    A(f"  ds_write_b64 v{vAML}, {vr(vM,2)}")
    A("  s_nop 0")
    for i in range(4):
        for j in range(4):
            A(f"  v_cndmask_b32 v{TMP+4*i+j}, v{O+16+4*j+i}, v{O+4*j+i}, vcc")
        A(f"  ds_write_b128 v{vAOW}, {vr(TMP+4*i,4)} offset:{16*i}")
    A("  s_waitcnt lgkmcnt(0)")
    A("  s_barrier")
    stamp()
    A(f"  ds_read_b128 {vr(E,4)}, v{vAMR}")
    A(f"  ds_read_b128 {vr(E+4,4)}, v{vAMR} offset:16")
    for k in range(4):
        A(f"  ds_read_b128 {vr(R+4*k,4)}, v{vAOR} offset:{TW*k}")
    MM = S; LL = S + 1
    A(f"  v_and_b32 v{vY}, 1, v0")
    A(f"  v_cmp_eq_u32 vcc, 0, v{vY}")
    A("  s_waitcnt lgkmcnt(4)")
    A(f"  v_max3_f32 v{MM}, v{E}, v{E+2}, v{E+4}")
    A(f"  v_max_f32 v{MM}, v{MM}, v{E+6}")
    for k in range(4):
        A(f"  v_sub_f32 v{E+2*k}, v{E+2*k}, v{MM}")
    for k in range(4):
        A(f"  v_exp_f32 v{E+2*k}, v{E+2*k}")
    for k in range(4):
        A(f"  s_waitcnt lgkmcnt({3-k})")
        for j in range(4):
            if k == 0:
                A(f"  v_mul_f32 v{R+j}, v{E}, v{R+j}")
            else:
                A(f"  v_fmac_f32 v{R+j}, v{E+2*k}, v{R+4*k+j}")
    A(f"  global_store_dwordx4 v{vAWS}, {vr(R,4)}, s[22:23] sc1")
    A(f"  v_mul_f32 v{LL}, v{E}, v{E+1}")
    for k in range(1, 4):
        A(f"  v_fmac_f32 v{LL}, v{E+2*k}, v{E+2*k+1}")
    A(f"  v_cndmask_b32 v{LL}, v{LL}, v{MM}, vcc")
    A("  s_mov_b32 s64, 3")
    A("  s_mov_b32 s65, 3")
    A("  s_mov_b64 exec, s[64:65]")
    A(f"  global_store_dword v{vAWM}, v{LL}, s[22:23] sc1")
    A("  s_mov_b64 exec, -1")
    if o.tail == "none":
        stamp()
        A("  s_mov_b32 s69, 0")
        A("  s_branch L_fin")
    A("  s_lshl_b32 s64, s24, 6")
    A(f"  v_mov_b32 v{vY}, s64")
    A(f"  v_mov_b32 v{vY+1}, 1")
    A("  v_and_b32 v1, 31, v0")
    A("  v_lshrrev_b32 v2, 5, v0")
    A("  v_and_b32 v3, 63, v0")
    A("  v_lshlrev_b32 v4, 15, v2")
    A("  v_lshl_add_u32 v4, v1, 4, v4")
    A("  s_lshl_b32 s66, s24, 18")
    A("  s_add_u32 s66, s66, 0x1000")
    A("  v_add_u32 v4, s66, v4")
    A("  v_add_u32 v5, 0x2000, v4")
    A("  v_add_u32 v6, 0x4000, v4")
    A("  v_add_u32 v7, 0x6000, v4")
    A(f"  s_add_u32 s68, s63, {WS_M}")
    A("  v_lshl_add_u32 v8, v3, 2, s68")
    A("  v_lshl_add_u32 v9, v2, 5, s68")
    A(f"  v_add_u32 v14, {WS_L-WS_M}, v8")
    A("  s_waitcnt vmcnt(0)")
    A("  s_barrier")
    if o.tail != "none":
        stamp()
    A("  s_cmp_lg_u32 s3, 0")
    A("  s_cbranch_scc1 L_wait")
    A("  s_mov_b64 exec, 1")
    A(f"  global_atomic_add v{vY+2}, v{vY}, v{vY+1}, s[20:21] sc0 sc1")
    A("  s_waitcnt vmcnt(0)")
    A(f"  v_readfirstlane_b32 s65, v{vY+2}")
    A(f"  ds_write_b32 v{vTK}, v{vY+2}")
    A("  s_cmp_lt_u32 s65, 56")
    A("  s_cbranch_scc1 L_pdone")
    A("  s_cmp_eq_u32 s65, 63")
    A("  s_cbranch_scc1 L_pdone")
    A("L_poll:")
    A(f"  global_load_dword v{vY+2}, v{vY}, s[20:21] sc1")
    A("  s_waitcnt vmcnt(0)")
    A(f"  v_readfirstlane_b32 s66, v{vY+2}")
    A("  s_cmp_ge_u32 s66, 64")
    A("  s_cbranch_scc1 L_pdone")
    if o.psleep:
        A(f"  s_sleep {o.psleep}")
    A("  s_branch L_poll")
    A("L_pdone:")
    A("  s_mov_b64 exec, -1")
    A("  s_waitcnt lgkmcnt(0)")
    A("L_wait:")
    A("  s_barrier")
    A(f"  ds_read_b32 v{vCNT}, v{vTK}")
    A("  s_waitcnt lgkmcnt(0)")
    A(f"  v_readfirstlane_b32 s69, v{vCNT}")
    A("  s_cmp_lt_u32 s69, 56")
    A("  s_cbranch_scc1 L_fin")
    A("  s_sub_u32 s69, s69, 56")
    A("  s_lshl_b32 s67, s69, 8")
    A("  s_add_u32 s44, s22, s67")
    A("  s_addc_u32 s45, s23, 0")
    A("  s_add_u32 s46, s44, s67")
    A("  s_addc_u32 s47, s45, 0")
    A("  global_load_dword v12, v8, s[44:45] sc1")
    A("  global_load_dword v13, v14, s[44:45] sc1")
    A("  global_load_dwordx4 v[16:19], v9, s[44:45] sc1")
    A("  global_load_dwordx4 v[20:23], v9, s[44:45] offset:16 sc1")
    for k in range(8):
        A(f"  global_load_dwordx4 v[{24+4*k}:{27+4*k}], v{4+k//2}, s[46:47] offset:{-4096 if k % 2 == 0 else 0} sc1")
    stamp()
    A("  s_add_u32 s67, s67, s63")
    A("  v_lshlrev_b32 v4, 4, v0")
    A("  v_lshlrev_b32 v6, 3, v0")
    A("  v_lshl_add_u32 v5, v0, 2, s67")
    A("  s_waitcnt vmcnt(10)")

    def allreduce(op, v, t):
        for ror in (8, 4, 2, 1):
            A("  s_nop 1")
            A(f"  {op}_dpp v{v}, v{v}, v{v} row_ror:{ror} row_mask:0xf bank_mask:0xf")
        xgroup(op, v, t)
    A("  v_mov_b32 v14, v12")
    allreduce("v_max_f32", 14, 15)
    A("  v_sub_f32 v12, v12, v14")
    A("  s_waitcnt vmcnt(8)")
    for k in range(8):
        A(f"  v_sub_f32 v{16+k}, v{16+k}, v14")
    A("  v_exp_f32 v12, v12")
    for k in range(8):
        A(f"  v_exp_f32 v{16+k}, v{16+k}")
    A("  v_mul_f32 v13, v12, v13")
    for k in range(8):
        A(f"  s_waitcnt vmcnt({7-k})")
        for j in range(4):
            if k == 0:
                A(f"  v_mul_f32 v{56+j}, v16, v{24+j}")
            else:
                A(f"  v_fmac_f32 v{56+j}, v{16+k}, v{24+4*k+j}")
    A(f"  ds_write_b128 v4, v[56:59] offset:{L_K}")
    allreduce("v_add_f32", 13, 15)
    A("  v_rcp_f32 v13, v13")
    A("  s_waitcnt lgkmcnt(0)")
    A("  s_barrier")
    A("  s_cmp_lg_u32 s3, 0")
    A("  s_cbranch_scc1 L_fin")
    for k in range(8):
        A(f"  ds_read_b64 v[{16+2*k}:{17+2*k}], v6 offset:{L_K+512*k}")
    A("  s_waitcnt lgkmcnt(0)")
    n = 8
    while n > 1:
        n //= 2
        for k in range(n):
            A(f"  v_pk_add_f32 v[{16+2*k}:{17+2*k}], v[{16+2*k}:{17+2*k}], v[{16+2*(k+n)}:{17+2*(k+n)}]")
    A("  v_mul_f32 v16, v13, v16")
    A("  v_mul_f32 v17, v13, v17")
    A("  v_cvt_pk_bf16_f32 v16, v16, v17")
    A("  global_store_dword v5, v16, s[18:19]")
    A("L_fin:")
    if o.stamp:
        A("  s_waitcnt vmcnt(0)")
        stamp()
        A("  s_getreg_b32 s68, hwreg(HW_REG_XCC_ID)")
        A("  s_waitcnt lgkmcnt(0)")
        A("  v_and_b32 v1, 63, v0")
        A("  v_mov_b32 v20, 0")
        for i in range(nst[0]):
            A(f"  v_writelane_b32 v20, s{70+2*i}, {i}")
        pass
        pass
        A("  v_writelane_b32 v20, s68, 14")
        A("  v_writelane_b32 v20, s69, 15")
        A("  s_lshl_b32 s68, s2, 2")
        A("  s_add_u32 s68, s68, s3")
        A("  s_lshl_b32 s68, s68, 6")
        A(f"  s_add_u32 s68, s68, {2<<20}")
        A("  v_lshl_add_u32 v21, v1, 2, s68")
        A("  v_cmp_gt_u32 vcc, 16, v1")
        A("  s_and_saveexec_b64 s[66:67], vcc")
        A("  global_store_dword v21, v20, s[22:23]")
    A("L_end:")
    A("  s_endpgm")
    return K, NV, 102, LDS_BYTES, 256


def generate(o):
    body = []
    A = body.append
    A('.amdgcn_target "amdgcn-amd-amdhsa--gfx950"')
    A(".text")
    k, nv, ns, lds, threads = gen_main(A, o)
    A('.section .rodata,"a"')
    A(".p2align 6")
    descriptor(A, k, nv, ns)
    head = HEADER + f"; @launch grid=(256,1,1) block=({threads},1,1) lds={lds}\n"
    head += """; Split-KV decode attention with on-the-fly dequantisation (generated by a hand-written Python generator).
;  * the 4 waves merge in LDS, publish (O, max, sum) to d_ws, arrive on a counter in d_debug; the last 8 arrivers
"""
    return head + "\n".join(body) + "\n"


if __name__ == "__main__":
    ap = argparse.ArgumentParser()
    ap.add_argument("-o", default="cdna_kernels/" + NAME + ".s")
    ap.add_argument("--flags", default="nt")
    ap.add_argument("--stamp", action="store_true")
    ap.add_argument("--tail", default="atomic")
    ap.add_argument("--pro", type=int, default=1)
    ap.add_argument("--psleep", type=int, default=2)
    ap.add_argument("--align", type=int, default=0)
    ap.add_argument("--mimic", type=int, default=1)
    ap.add_argument("--lag", type=int, default=2)
    ap.add_argument("--early", type=int, default=1)
    ap.add_argument("--lagv", type=int, default=2)
    ap.add_argument("--order", default="um")
    ap.add_argument("--p1", type=int, default=3)
    ap.add_argument("--pa", type=int, default=1)
    ap.add_argument("--wv", type=int, default=1)
    ap.add_argument("--pf", type=int, default=0)
    ap.add_argument("--pfflags", default="nt")
    o = ap.parse_args()
    open(o.o, "w").write(generate(o))
```
